```python
import torch

def _softmax(x, axis=-1):
    return torch.softmax(x, dim=axis)
def _gelu(x):
    return torch.nn.functional.gelu(x, approximate="tanh")
def _silu(x):
    return torch.nn.functional.silu(x)
def _sigmoid(x):
    return torch.sigmoid(x)
def _layernorm(x, axis=-1, eps=1e-5):
    m = x.mean(dim=axis, keepdim=True)
    v = x.var(dim=axis, keepdim=True, unbiased=False)
    return (x - m) / torch.sqrt(v + eps)
def _scatter_add(tgt, idx, src, axis=0):
    return tgt.clone().index_add_(axis, idx, src)
def _segment_sum(src, seg, n):
    out = torch.zeros((n,) + src.shape[1:], dtype=src.dtype)
    return out.index_add_(0, seg, src)
def _pad(x, pw):
    flat = tuple(v for pair in reversed(pw) for v in pair)
    return torch.nn.functional.pad(x, flat)

kernel_name = 'standalone__softmax_full_causal__prompt'

def setup_inputs():

    _w = (lambda a: (lambda t: t.to(torch.bfloat16) if t.is_floating_point() else t)(torch.as_tensor(a)))
    B, H, S, D = 1, 16, 2048, 256
    return {
        "q": _w((lambda *s: torch.randn(*s, dtype=torch.bfloat16) * 0.8)(B, H, S, D)),
        "k": _w((lambda *s: torch.randn(*s, dtype=torch.bfloat16) * 0.8)(B, H, S, D)),
        "v": _w((lambda *s: torch.randn(*s, dtype=torch.bfloat16) * 0.05)(B, H, S, D)),
    }

def reference(q, k, v):
    B, H, S, D = q.shape[0], q.shape[1], q.shape[2], q.shape[3]
    scale = D ** -0.5
    scores = torch.einsum('bhqd,bhkd->bhqk', q, k) * scale
    qi = torch.reshape(torch.arange(S), (1, 1, S, 1))
    kj = torch.reshape(torch.arange(S), (1, 1, 1, S))
    causal_bias = (lambda x, dt: x.to(dt))(kj > qi, scores.dtype) * (-1e9)
    attn = _softmax(scores + causal_bias, axis=-1)
    return torch.einsum('bhqk,bhkd->bhqd', attn, v)
```

```python
import struct
import sys
import re

N0 = 18
N1 = 12
LK = 8
LV = 6
BAR_GAP = 28
BUDGET = 24
DMA_COST = 8
for a in sys.argv[2:]:
    k, v = a.split("=")
    globals()[k] = int(v)


def f2u(x):
    return struct.unpack("<I", struct.pack("<f", x))[0]


C_SCALE = 0.0625 * 1.4426950408889634
THR = 65536.0
NEGBIG = 0xF149F2CA

def S_(buf, b):
    return 32 * buf + 16 * b
P0 = 64
KF = 96
VF = 128
KA = 160
VA = 168
KD = 172
VD = 180
TMP = 184
V_L = 200
V_M = 201
V_NMC = 202
V_SA = 203
V_SB = 204
V_QREL = 207
V_THR = 208
V_NEG = 209
V_LANE = 210
V_T0 = 211
V_T1 = 212
V_T2 = 213
V_QOFF = 214
V_WSOFF = 215
V_ALPHA = 216
V_T3 = 217
V_THRC = 218
EP = 0

A_O = 0
A_Q = 128
A_Q2 = 192

S_C = 28
S_WB = 29
S_KN = 30
S_VN = 31
S_ENDA = 32
S_STARTB = 33
S_ENDB = 34
S_OOB = 35
S_CNT = 36
S_KEY0 = 37
S_NSEG = 38
S_ACT = 39
S_RET = 40
S_MK = 42
S_QB = 50
S_T0 = 51
S_N = 52
S_QB2 = 53
S_T02 = 54
S_N2 = 55
S_ACT2 = 56
S_TMP = 57
S_TMP2 = 58
S_PID = 59
S_WAVE = 60
S_TMP3 = 61
S_SOFF = 62
S_SHIFT = 63


class Em:
    def __init__(self):
        self.blocks = {}
        self.order = []
        self.cur = None
        self.ldsq = []

    def block(self, name):
        self.cur = []
        self.blocks[name] = self.cur
        self.order.append(name)

    def e(self, s):
        self.cur.append(s)

    def label(self, l):
        self.cur.append(l + ":")

    def ds(self, text, dst):
        self.e(text)
        self.ldsq.append(set(dst))
        assert len(self.ldsq) <= 15, "too many outstanding LDS ops"

    def need(self, regs):
        regs = set(regs)
        last = -1
        for i, d in enumerate(self.ldsq):
            if d & regs:
                last = i
        if last >= 0:
            n = len(self.ldsq) - 1 - last
            self.e(f"s_waitcnt lgkmcnt({n})")
            self.ldsq = self.ldsq[last + 1:]
            return True
        return False

    def lds_drain(self):
        self.ldsq = []


E = Em()


def vr(a, n):
    return f"v[{a}:{a + n - 1}]"


def ar(a, n):
    return f"a[{a}:{a + n - 1}]"


def kfrag(i):
    return KF + 4 * (i % 8)


def vfrag(i):
    return VF + 4 * (i % 8)


def k_read(i, slot):
    b, s = divmod(i, 16)
    off = slot * 32768 + b * 16384 + (s // 8) * 256
    d = kfrag(i)
    E.ds(f"ds_read_b128 {vr(d, 4)}, v{KA + s % 8} offset:{off}", range(d, d + 4))


def v_read(i, slot, half):
    s, j = divmod(i, 8)
    off = slot * 32768 + s * 8192 + (j // 4) * 256 + half * 4096
    d = vfrag(i) + 2 * half
    E.ds(f"ds_read_b64_tr_b16 {vr(d, 2)}, v{VA + j % 4} offset:{off}", range(d, d + 2))


def qk_mfma(i, sbuf):
    b, s = divmod(i, 16)
    regs = list(range(kfrag(i), kfrag(i) + 4))
    if i % 2 == 0 and i + 1 < 32:
        regs += list(range(kfrag(i + 1), kfrag(i + 1) + 4))
    E.need(regs)
    D = vr(S_(sbuf, b), 16)
    C = D if s > 0 else "0"
    E.e(f"v_mfma_f32_32x32x16_bf16 {D}, {vr(kfrag(i), 4)}, {ar(A_Q + 4 * s, 4)}, {C}")


def pv_mfma(i, pbuf):
    s, j = divmod(i, 8)
    regs = list(range(vfrag(i), vfrag(i) + 4))
    if i % 2 == 0 and i + 1 < 32:
        regs += list(range(vfrag(i + 1), vfrag(i + 1) + 4))
    E.need(regs)
    D = ar(A_O + 16 * j, 16)
    E.e(f"v_mfma_f32_32x32x16_bf16 {D}, {vr(vfrag(i), 4)}, {vr(P0 + 16 * pbuf + 4 * s, 4)}, {D}")


def dma_ops(kslot, vslot):
    ops = []

    def m0(val):
        return (4, lambda: E.e(f"s_add_u32 m0, s{S_WB}, {val}"))

    def ld(voff, srd, soff, imm):
        return (DMA_COST, lambda: E.e(f"buffer_load_dwordx4 v{voff}, s[{srd}:{srd + 3}], s{soff} offen offset:{imm} lds"))

    def upd(sp):
        def f():
            E.e(f"s_add_u32 s{sp}, s{sp}, 0x8000")
            E.e(f"s_cmp_eq_u32 s{sp}, s{S_ENDA}")
            E.e(f"s_cselect_b32 s{sp}, s{S_STARTB}, s{sp}")
            E.e(f"s_cmp_eq_u32 s{sp}, s{S_ENDB}")
            E.e(f"s_cselect_b32 s{sp}, s{S_OOB}, s{sp}")
        return (20, f)

    for g in range(2):
        ops.append(m0(kslot * 32768 + 4096 * g))
        for jj in range(4):
            ops.append(ld(KD + 4 * g + jj, 8, S_KN, 1024 * jj))
    ops.append(upd(S_KN))
    for g in range(2):
        ops.append(m0(65536 + vslot * 32768 + 4096 * g))
        for jj in range(4):
            ops.append(ld(VD + 2 * g + (jj % 2), 12, S_VN, 1024 * jj))
    ops.append(upd(S_VN))
    return ops


def sm_stream(sbuf, pairs, first):
    ops = []
    n = len(pairs)
    st = {"first": first}

    def T(idx):
        return TMP + 2 * (idx % 4)

    def F(idx):
        k = pairs[idx]
        r = 32 * sbuf + 2 * k
        t = T(idx)
        ops.append((4, lambda: E.e(f"v_fma_f32 v{t}, v{r}, s{S_C}, v{V_NMC}")))
        ops.append((4, lambda: E.e(f"v_fma_f32 v{t + 1}, v{r + 1}, s{S_C}, v{V_NMC}")))

    def X(idx):
        t = T(idx)
        ops.append((8, lambda: E.e(f"v_exp_f32 v{t}, v{t}")))
        ops.append((8, lambda: E.e(f"v_exp_f32 v{t + 1}, v{t + 1}")))

    def A(idx):
        k = pairs[idx]
        t = T(idx)
        p = P0 + 16 * sbuf + k
        if st["first"]:
            st["first"] = False
            ops.append((4, lambda: E.e(f"v_mov_b32 v{V_SA}, v{t}")))
            ops.append((4, lambda: E.e(f"v_mov_b32 v{V_SB}, v{t + 1}")))
        else:
            ops.append((4, lambda: E.e(f"v_add_f32 v{V_SA}, v{V_SA}, v{t}")))
            ops.append((4, lambda: E.e(f"v_add_f32 v{V_SB}, v{V_SB}, v{t + 1}")))
        ops.append((4, lambda: E.e(f"v_cvt_pk_bf16_f32 v{p}, v{t}, v{t + 1}")))

    for i in range(n + 2):
        if i < n:
            F(i)
        if 1 <= i <= n:
            X(i - 1)
        if i >= 2:
            A(i - 2)
    return ops


def mask_ops(sbuf, b):
    ops = []
    for q in range(4):
        for r4 in range(4):
            r = 4 * q + r4
            o = 32 * b + 8 * q + r4
            ops.append((4, lambda o=o, r4=r4: E.e(f"v_cmp_lt_i32 s[{S_MK + 2 * r4}:{S_MK + 2 * r4 + 1}], v{V_THR}, {o}")))
        for r4 in range(4):
            r = 4 * q + r4
            reg = S_(sbuf, b) + r
            ops.append((4, lambda reg=reg, r4=r4: E.e(f"v_cndmask_b32 v{reg}, v{reg}, v{V_NEG}, s[{S_MK + 2 * r4}:{S_MK + 2 * r4 + 1}]")))
    return ops


def run_ops(ops):
    for c, f in ops:
        f()


def schedule(mf, fixed, stream, first_gap, last_gap):
    n = len(mf)
    free = []
    for g in range(n):
        c = sum(x[0] for x in fixed[g]) + 2
        free.append(max(0, BUDGET - c) if first_gap <= g <= last_gap else 0)
    T = sum(x[0] for x in stream)
    F = sum(free)
    scale = T / F if F > 0 else 0
    credit = 0.0
    si = 0
    for g in range(n):
        mf[g]()
        run_ops(fixed[g])
        if first_gap <= g <= last_gap:
            credit += free[g] * scale
            while si < len(stream) and (credit >= stream[si][0] * 0.5 or g == last_gap):
                credit -= stream[si][0]
                stream[si][1]()
                si += 1
    assert si == len(stream)


_rare_sites = []


def check_and_accumulate(par, tag):
    E.e(f"v_add_f32 v{V_SA}, v{V_SA}, v{V_SB}")
    E.e(f"v_cmp_nle_f32 vcc, v{V_SA}, v{V_THRC}")
    E.e("s_nop 3")
    E.e(f"s_cbranch_vccz .Lok_{tag}")
    E.e(f"s_getpc_b64 s[{S_RET}:{S_RET + 1}]")
    E.e(f"s_branch .Lrare{par}")
    E.label(f".Lok_{tag}")
    E.e(f"v_add_f32 v{V_L}, v{V_L}, v{V_SA}")


def b_tail_fixed(fixed, kslot_next, dma):
    def bar():
        E.e("s_waitcnt vmcnt(0) lgkmcnt(0)")
        E.lds_drain()
        E.e("s_barrier")
    fixed[BAR_GAP].append((8, bar))
    ng = 32 - BAR_GAP
    idx = 0
    per = (LK + ng - 1) // ng
    for g in range(BAR_GAP, 32):
        for _ in range(per):
            if idx < LK:
                fixed[g].append((4, lambda i=idx: k_read(i, kslot_next)))
                idx += 1
    nd = 0
    for g in range(BAR_GAP, 32):
        for _ in range(2):
            if dma:
                fixed[g].append(dma.pop(0))
    return dma


NDMA_TAIL = 2 * (32 - BAR_GAP)


def phase_a(par, dma_rest, with_mfma=True, tag=""):
    nb = 1 - par
    mf = []
    fixed = [[] for _ in range(32)]
    for i in range(32):
        if with_mfma:
            mf.append(lambda i=i: qk_mfma(i, nb))
            if i + LK < 32:
                fixed[i].append((4, lambda i=i: k_read(i + LK, nb)))
        else:
            mf.append(lambda: None)
    g = 0
    for op in dma_rest:
        fixed[g].append(op)
        g += 1 if op[0] > 4 else 0
        g = min(g, 23)
    g0 = 32 - LV
    for k in range(LV):
        fixed[g0 + k - 1].append((4, lambda k=k: v_read(k, par, 0)))
        fixed[g0 + k - 1].append((4, lambda k=k: v_read(k, par, 1)))
    stream = sm_stream(par, list(range(N1 // 2, 16)), first=(N1 == 0))
    schedule(mf, fixed, stream, 0, 29)
    check_and_accumulate(par, tag)


def phase_b(par, masked, last):
    nb = 1 - par
    mf = [lambda i=i: pv_mfma(i, par) for i in range(32)]
    fixed = [[] for _ in range(32)]
    for i in range(32):
        if i + LV < 32:
            fixed[i].append((4, lambda i=i: v_read(i + LV, par, 0)))
            fixed[i].append((4, lambda i=i: v_read(i + LV, par, 1)))
    stream = []
    dma = []
    if not last:
        if masked:
            stream += mask_ops(nb, 0)
        stream += sm_stream(nb, list(range(0, N1 // 2)), first=True)
        if masked:
            stream += mask_ops(nb, 1)
        dma = dma_ops(nb, par)
        dma = b_tail_fixed(fixed, par, dma)
    schedule(mf, fixed, stream, 1 if not masked else 1, BAR_GAP - 1)
    return dma


def set_thr(off_tiles_from_end):
    E.e(f"s_add_u32 s{S_TMP}, s{S_T0}, s{S_N}")
    E.e(f"s_sub_u32 s{S_TMP}, s{S_TMP}, {off_tiles_from_end}")
    E.e(f"s_lshl_b32 s{S_TMP}, s{S_TMP}, 6")
    E.e(f"v_subrev_u32 v{V_THR}, s{S_TMP}, v{V_QREL}")


def iteration(par, masked, tag, dma_in):
    phase_a(par, dma_in, True, tag)
    return phase_b(par, masked, False)


def tile_max(sbuf, dst, t1):
    base = 32 * sbuf
    E.e(f"v_max3_f32 v{dst}, v{base}, v{base + 1}, v{base + 2}")
    E.e(f"v_max3_f32 v{t1}, v{base + 3}, v{base + 4}, v{base + 5}")
    r = 6
    acc = [dst, t1]
    k = 0
    while r + 1 < 32:
        E.e(f"v_max3_f32 v{acc[k]}, v{acc[k]}, v{base + r}, v{base + r + 1}")
        k ^= 1
        r += 2
    E.e(f"v_max_f32 v{dst}, v{dst}, v{t1}")
    E.e(f"v_mov_b32 v{t1}, v{dst}")
    E.e("s_nop 1")
    E.e(f"v_permlane32_swap_b32 v{dst}, v{t1}")
    E.e(f"v_max_f32 v{dst}, v{dst}, v{t1}")


def gen():
    E.block("setup")
    E.e("s_cmp_ge_u32 s2, 256")
    E.e("s_cbranch_scc1 .Lend")
    E.e("s_load_dwordx4 s[4:7], s[0:1], 0")
    E.e("s_load_dwordx4 s[8:11], s[0:1], 16")
    E.e("s_load_dwordx4 s[12:15], s[0:1], 32")
    E.e(f"v_lshrrev_b32 v{V_T0}, 6, v0")
    E.e(f"v_and_b32 v{V_LANE}, 63, v0")
    E.e("s_nop 0")
    E.e(f"v_readfirstlane_b32 s{S_WAVE}, v{V_T0}")
    E.e("s_and_b32 s64, s2, 7")
    E.e("s_lshr_b32 s65, s2, 3")
    E.e("s_and_b32 s66, s65, 1")
    E.e("s_lshl_b32 s64, s64, 1")
    E.e("s_add_u32 s64, s64, s66")
    E.e("s_lshr_b32 s65, s65, 1")
    E.e("s_and_b32 s67, s65, 1")
    E.e("s_lshr_b32 s65, s65, 1")
    E.e(f"s_lshl_b32 s{S_PID}, s64, 3")
    E.e(f"s_add_u32 s{S_PID}, s{S_PID}, s65")
    E.e("s_lshl_b32 s68, s64, 20")
    E.e("s_waitcnt lgkmcnt(0)")
    E.e("s_mov_b32 s70, s6"); E.e("s_mov_b32 s71, s7")
    E.e("s_mov_b32 s72, s8"); E.e("s_mov_b32 s73, s9")
    E.e("s_mov_b32 s74, s10"); E.e("s_mov_b32 s75, s11")
    E.e("s_mov_b32 s76, s12"); E.e("s_mov_b32 s77, s13")
    E.e("s_mov_b32 s78, s14"); E.e("s_mov_b32 s79, s15")
    for (srd, lo, hi) in ((4, 4, 5), (8, 70, 71), (12, 72, 73), (16, 74, 75)):
        E.e(f"s_add_u32 s{srd}, s{lo}, s68")
        E.e(f"s_addc_u32 s{srd + 1}, s{hi}, 0")
        E.e(f"s_and_b32 s{srd + 1}, s{srd + 1}, 0xffff")
        E.e(f"s_mov_b32 s{srd + 2}, 0x100000")
        E.e(f"s_mov_b32 s{srd + 3}, 0x00020000")
    E.e("s_mov_b32 s20, s78"); E.e("s_and_b32 s21, s79, 0xffff")
    E.e("s_mov_b32 s22, 0x10000000"); E.e("s_mov_b32 s23, 0x00020000")
    E.e("s_mov_b32 s24, s76"); E.e("s_and_b32 s25, s77, 0xffff")
    E.e("s_mov_b32 s26, 256"); E.e("s_mov_b32 s27, 0x00020000")
    E.e(f"s_mov_b32 s{S_C}, {f2u(C_SCALE):#x}")
    E.e(f"s_lshl_b32 s{S_WB}, s{S_WAVE}, 13")
    E.e(f"s_mov_b32 s{S_OOB}, 0x40000000")
    E.e("s_lshl_b32 s69, s65, 1")
    E.e("s_sub_u32 s80, 32, s69")
    E.e("s_add_u32 s81, s69, 2")
    E.e("s_sub_u32 s82, 15, s65")
    E.e("s_lshl_b32 s82, s82, 16")
    E.e("s_lshl_b32 s83, s65, 16")
    E.e(f"s_min_u32 s84, s80, {N0}")
    E.e("s_sub_u32 s85, s80, s84")
    E.e("s_cmp_eq_u32 s67, 0")
    E.e("s_cbranch_scc0 .Lwg1")
    E.e(f"s_mov_b32 s{S_QB}, s82")
    E.e(f"s_mov_b32 s{S_T0}, 0")
    E.e(f"s_mov_b32 s{S_N}, s84")
    E.e(f"s_mov_b32 s{S_NSEG}, 1")
    E.e(f"s_cmp_lg_u32 s85, 0")
    E.e(f"s_cselect_b32 s{S_ACT}, 1, 0")
    E.e(f"s_mov_b32 s{S_ENDA}, 1")
    E.e(f"s_mov_b32 s{S_STARTB}, 1")
    E.e(f"s_lshl_b32 s{S_ENDB}, s84, 15")
    E.e("s_branch .Lsegdone")
    E.label(".Lwg1")
    E.e(f"s_mov_b32 s{S_QB}, s83")
    E.e(f"s_mov_b32 s{S_T0}, 0")
    E.e(f"s_mov_b32 s{S_N}, s81")
    E.e(f"s_mov_b32 s{S_ACT}, 0")
    E.e(f"s_mov_b32 s{S_QB2}, s82")
    E.e(f"s_mov_b32 s{S_T02}, s84")
    E.e(f"s_mov_b32 s{S_N2}, s85")
    E.e(f"s_mov_b32 s{S_ACT2}, 1")
    E.e(f"s_cmp_lg_u32 s85, 0")
    E.e(f"s_cselect_b32 s{S_NSEG}, 2, 1")
    E.e(f"s_cbranch_scc0 .Lwg1_single")
    E.e(f"s_lshl_b32 s{S_ENDA}, s81, 15")
    E.e(f"s_lshl_b32 s{S_STARTB}, s84, 15")
    E.e(f"s_lshl_b32 s{S_ENDB}, s80, 15")
    E.e("s_branch .Lsegdone")
    E.label(".Lwg1_single")
    E.e(f"s_mov_b32 s{S_ENDA}, 1")
    E.e(f"s_mov_b32 s{S_STARTB}, 1")
    E.e(f"s_lshl_b32 s{S_ENDB}, s81, 15")
    E.label(".Lsegdone")
    L = V_LANE
    E.e(f"v_and_b32 v{V_T0}, 31, v{L}")
    E.e(f"v_lshrrev_b32 v{V_T1}, 5, v{L}")
    E.e(f"s_lshl_b32 s{S_TMP}, s{S_WAVE}, 5")
    E.e(f"v_add_u32 v{V_T2}, s{S_TMP}, v{V_T0}")
    E.e(f"v_lshlrev_b32 v{V_QOFF}, 9, v{V_T2}")
    E.e(f"v_lshl_add_u32 v{V_QOFF}, v{V_T1}, 4, v{V_QOFF}")
    E.e(f"v_and_b32 v{V_T3}, 15, v{L}")
    for j in range(8):
        E.e(f"v_add_u32 v{KA + j}, {2 * j}, v{V_T1}")
        E.e(f"v_xor_b32 v{KA + j}, v{KA + j}, v{V_T3}")
        E.e(f"v_lshlrev_b32 v{KA + j}, 4, v{KA + j}")
        E.e(f"v_lshl_add_u32 v{KA + j}, v{V_T0}, 9, v{KA + j}")
    E.e(f"v_bfe_u32 v{TMP}, v{L}, 2, 2")
    E.e(f"v_and_b32 v{TMP + 1}, 3, v{L}")
    E.e(f"v_bfe_u32 v{TMP + 2}, v{L}, 4, 1")
    E.e(f"v_lshl_add_u32 v{TMP + 3}, v{V_T1}, 2, v{TMP}")
    E.e(f"v_lshlrev_b32 v{TMP + 3}, 9, v{TMP + 3}")
    E.e(f"v_lshl_add_u32 v{TMP + 3}, v{TMP + 2}, 5, v{TMP + 3}")
    E.e(f"v_lshl_add_u32 v{TMP + 3}, v{TMP + 1}, 3, v{TMP + 3}")
    E.e(f"v_add_u32 v{TMP + 3}, 0x10000, v{TMP + 3}")
    for i in range(4):
        E.e(f"v_xor_b32 v{VA + i}, {i}, v{TMP}")
        E.e(f"v_lshl_add_u32 v{VA + i}, v{VA + i}, 6, v{TMP + 3}")
    E.e(f"v_lshl_add_u32 v{TMP + 4}, v{V_T1}, 9, s{S_WB}")
    for j in range(8):
        E.e(f"v_add_u32 v{KD + j}, {2 * j % 16}, v{V_T1}")
        E.e(f"v_xor_b32 v{KD + j}, v{KD + j}, v{V_T0}")
        E.e(f"v_lshl_add_u32 v{KD + j}, v{KD + j}, 4, v{TMP + 4}")
        if j >= 4:
            E.e(f"v_add_u32 v{KD + j}, 0x1000, v{KD + j}")
    for g in range(2):
        for o in range(2):
            d = VD + 2 * g + o
            E.e(f"v_add_u32 v{d}, {2 * o}, v{V_T1}")
            E.e(f"v_lshlrev_b32 v{d}, 2, v{d}")
            E.e(f"v_xor_b32 v{d}, v{d}, v{V_T0}")
            E.e(f"v_lshl_add_u32 v{d}, v{d}, 4, v{TMP + 4}")
            if g:
                E.e(f"v_add_u32 v{d}, 0x1000, v{d}")
    E.e(f"v_mov_b32 v{V_NEG}, {NEGBIG:#x}")
    E.e(f"v_mov_b32 v{V_THRC}, {f2u(THR):#x}")
    E.e(f"s_mul_i32 s{S_TMP}, s{S_WAVE}, 0x9000")
    E.e(f"s_lshl_b32 s{S_TMP2}, s{S_PID}, 18")
    E.e(f"s_add_u32 s{S_TMP}, s{S_TMP}, s{S_TMP2}")
    E.e(f"v_lshl_add_u32 v{V_WSOFF}, v{L}, 4, s{S_TMP}")
    E.e(f"s_lshl_b32 s{S_KN}, s{S_T0}, 15")
    E.e(f"s_mov_b32 s{S_VN}, s{S_KN}")
    for s in range(16):
        E.e(f"buffer_load_dwordx4 {ar(A_Q + 4 * s, 4)}, v{V_QOFF}, s[4:7], s{S_QB} offen offset:{32 * s}")
    d0 = dma_ops(0, 0)
    run_ops(d0)
    d1 = dma_ops(1, 1)[:11]
    run_ops(d1)
    E.e(f"s_cmp_eq_u32 s{S_NSEG}, 2")
    E.e("s_cbranch_scc0 .Lseg")
    for s in range(16):
        E.e(f"buffer_load_dwordx4 {ar(A_Q2 + 4 * s, 4)}, v{V_QOFF}, s[4:7], s{S_QB2} offen offset:{32 * s}")

    E.block("prologue")
    E.label(".Lseg")
    E.e(f"s_lshr_b32 s{S_TMP}, s{S_QB}, 9")
    E.e(f"v_lshrrev_b32 v{V_T0}, 9, v{V_QOFF}")
    E.e(f"v_add_u32 v{V_QREL}, s{S_TMP}, v{V_T0}")
    E.e(f"v_lshrrev_b32 v{V_T1}, 5, v{V_LANE}")
    E.e(f"v_lshlrev_b32 v{V_T1}, 2, v{V_T1}")
    E.e(f"v_sub_u32 v{V_QREL}, v{V_QREL}, v{V_T1}")
    for i in range(128):
        E.e(f"v_accvgpr_write_b32 a{A_O + i}, 0")
    E.e(f"v_mov_b32 v{V_L}, 0")
    E.e("s_waitcnt vmcnt(0)")
    E.e("s_barrier")
    for i in range(LK):
        k_read(i, 0)
    for i in range(32):
        qk_mfma(i, 0)
        if i + LK < 32:
            k_read(i + LK, 0)
    E.e(f"s_lshl_b32 s{S_TMP}, s{S_T0}, 6")
    E.e(f"v_subrev_u32 v{V_THR}, s{S_TMP}, v{V_QREL}")
    E.e("s_nop 7")
    E.e("s_nop 3")
    run_ops(mask_ops(0, 0))
    run_ops(mask_ops(0, 1))
    tile_max(0, V_M, V_T0)
    E.e(f"v_mul_f32 v{V_NMC}, s{S_C}, v{V_M}")
    E.e(f"v_sub_f32 v{V_NMC}, 0, v{V_NMC}")
    run_ops(sm_stream(0, list(range(0, N1 // 2)), first=True))
    E.e("s_waitcnt vmcnt(0) lgkmcnt(0)")
    E.lds_drain()
    E.e("s_barrier")
    for i in range(LK):
        k_read(i, 1)
    dma = dma_ops(0, 1)
    run_ops(dma[:NDMA_TAIL])
    dma_rest_even = dma[NDMA_TAIL:]
    entry_q = list(E.ldsq)
    E.e(f"s_cmp_eq_u32 s{S_N}, 2")
    E.e("s_cbranch_scc1 .Lt0m")
    E.e(f"s_sub_u32 s{S_CNT}, s{S_N}, 2")
    E.e(f"s_lshr_b32 s{S_CNT}, s{S_CNT}, 1")

    E.block("iter0")
    E.label(".Lloop")
    r = iteration(0, False, "i0", dma_ops(0, 1)[NDMA_TAIL:])
    assert list(E.ldsq) == entry_q
    E.e(f"s_sub_u32 s{S_CNT}, s{S_CNT}, 1")
    E.e(f"s_cmp_eq_u32 s{S_CNT}, 0")
    E.e("s_cbranch_scc1 .Lt1m_pre")
    E.block("iter1")
    iteration(1, False, "i1", dma_ops(1, 0)[NDMA_TAIL:])
    assert list(E.ldsq) == entry_q
    E.e("s_branch .Lloop")
    E.block("iter1m")
    E.label(".Lt1m_pre")
    set_thr(2)
    iteration(1, True, "i1m", dma_ops(1, 0)[NDMA_TAIL:])
    assert list(E.ldsq) == entry_q
    E.block("iter0m")
    E.label(".Lt0m")
    set_thr(1)
    iteration(0, True, "i0m", dma_ops(0, 1)[NDMA_TAIL:])
    assert list(E.ldsq) == entry_q
    E.block("final1")
    E.e("s_waitcnt lgkmcnt(0)")
    E.lds_drain()
    phase_a(1, dma_ops(1, 0)[NDMA_TAIL:], with_mfma=False, tag="f1")
    phase_b(1, False, True)
    E.e("s_waitcnt lgkmcnt(0)")
    E.lds_drain()

    E.block("epilogue")
    E.e(f"v_mov_b32 v{V_T0}, v{V_L}")
    E.e("s_nop 1")
    E.e(f"v_permlane32_swap_b32 v{V_L}, v{V_T0}")
    E.e(f"v_add_f32 v{V_L}, v{V_L}, v{V_T0}")
    E.e(f"s_cmp_eq_u32 s{S_ACT}, 1")
    E.e("s_cbranch_scc1 .Lcombine")
    E.label(".Lstore")
    E.e(f"v_rcp_f32 v{V_ALPHA}, v{V_L}")
    E.e("s_nop 7")
    E.e("s_nop 3")
    for j in range(8):
        x = EP + 32 * (j % 2)
        for r_ in range(16):
            E.e(f"v_accvgpr_read_b32 v{x + r_}, a{A_O + 16 * j + r_}")
        for r_ in range(16):
            E.e(f"v_mul_f32 v{x + r_}, v{x + r_}, v{V_ALPHA}")
        for k in range(8):
            E.e(f"v_cvt_pk_bf16_f32 v{x + 16 + k}, v{x + 2 * k}, v{x + 2 * k + 1}")
        E.e("s_nop 1")
        for gp in range(2):
            y = x + 16 + 4 * gp
            E.e(f"v_permlane32_swap_b32 v{y}, v{y + 2}")
            E.e(f"v_permlane32_swap_b32 v{y + 1}, v{y + 3}")
        for gp in range(2):
            y = x + 16 + 4 * gp
            E.e(f"buffer_store_dwordx4 {vr(y, 4)}, v{V_QOFF}, s[16:19], s{S_QB} offen offset:{64 * j + 32 * gp}")
    E.e(f"s_cmp_eq_u32 s{S_NSEG}, 2")
    E.e("s_cbranch_scc0 .Lend")
    E.e(f"s_mov_b32 s{S_NSEG}, 1")
    E.e(f"s_mov_b32 s{S_QB}, s{S_QB2}")
    E.e(f"s_mov_b32 s{S_T0}, s{S_T02}")
    E.e(f"s_mov_b32 s{S_N}, s{S_N2}")
    E.e(f"s_mov_b32 s{S_ACT}, s{S_ACT2}")
    for i in range(64):
        E.e(f"v_accvgpr_mov_b32 a{A_Q + i}, a{A_Q2 + i}")
    E.e("s_branch .Lseg")

    E.block("combine")
    E.label(".Lcombine")
    E.e(f"s_lshl_b32 s{S_TMP}, s{S_PID}, 2")
    E.e(f"s_add_u32 s{S_TMP}, s{S_TMP}, s{S_WAVE}")
    E.e(f"s_and_b32 s{S_SHIFT}, s{S_TMP}, 7")
    E.e(f"s_lshl_b32 s{S_SHIFT}, s{S_SHIFT}, 2")
    E.e(f"s_lshr_b32 s{S_TMP}, s{S_TMP}, 3")
    E.e(f"s_lshl_b32 s{S_TMP}, s{S_TMP}, 2")
    E.e(f"v_mov_b32 v{V_T2}, s{S_TMP}")
    E.e(f"s_lshl_b32 s{S_TMP2}, 1, s{S_SHIFT}")
    E.e(f"v_mov_b32 v{V_T3}, s{S_TMP2}")
    E.e("s_mov_b64 s[64:65], exec")
    E.e("s_mov_b64 exec, 1")
    E.e(f"buffer_atomic_add v{V_T3}, v{V_T2}, s[24:27], 0 offen sc0 sc1")
    E.e("s_waitcnt vmcnt(0)")
    E.e("s_mov_b64 exec, s[64:65]")
    E.e("s_nop 0")
    E.e(f"v_readfirstlane_b32 s{S_TMP3}, v{V_T3}")
    E.e("s_nop 3")
    E.e(f"s_lshr_b32 s{S_TMP3}, s{S_TMP3}, s{S_SHIFT}")
    E.e(f"s_and_b32 s{S_TMP3}, s{S_TMP3}, 15")
    E.e(f"s_cmp_eq_u32 s{S_TMP3}, 0")
    E.e("s_cbranch_scc0 .Lsecond")
    E.e(f"s_mov_b32 s{S_SOFF}, 0")
    for k in range(32):
        E.e(f"buffer_store_dwordx4 {ar(A_O + 4 * k, 4)}, v{V_WSOFF}, s[20:23], s{S_SOFF} offen offset:{1024 * (k % 4)} sc1")
        if k % 4 == 3:
            E.e(f"s_add_u32 s{S_SOFF}, s{S_SOFF}, 0x1000")
    E.e(f"v_mov_b32 v{V_T0}, v{V_L}")
    E.e(f"v_mov_b32 v{V_T1}, v{V_M}")
    E.e(f"buffer_store_dwordx2 v[{V_T0 - 1}:{V_T0}], v{V_WSOFF}, s[20:23], s{S_SOFF} offen sc1") if False else None
    E.e(f"buffer_store_dword v{V_L}, v{V_WSOFF}, s[20:23], s{S_SOFF} offen sc1")
    E.e(f"buffer_store_dword v{V_M}, v{V_WSOFF}, s[20:23], s{S_SOFF} offen offset:4 sc1")
    E.e("s_waitcnt vmcnt(0)")
    E.e(f"s_lshl_b32 s{S_TMP2}, 4, s{S_SHIFT}")
    E.e(f"v_mov_b32 v{V_T3}, s{S_TMP2}")
    E.e("s_mov_b64 exec, 1")
    E.e(f"buffer_atomic_add v{V_T3}, v{V_T2}, s[24:27], 0 offen sc1")
    E.e("s_waitcnt vmcnt(0)")
    E.e("s_branch .Lend")
    E.label(".Lsecond")
    E.e(f"s_and_b32 s{S_TMP3}, s{S_TMP3}, 4")
    E.e(f"s_cmp_lg_u32 s{S_TMP3}, 0")
    E.e("s_cbranch_scc1 .Lready")
    E.label(".Lpoll")
    E.e("s_sleep 8")
    E.e(f"v_mov_b32 v{V_T3}, 0")
    E.e("s_mov_b64 exec, 1")
    E.e(f"buffer_atomic_add v{V_T3}, v{V_T2}, s[24:27], 0 offen sc0 sc1")
    E.e("s_waitcnt vmcnt(0)")
    E.e("s_mov_b64 exec, s[64:65]")
    E.e("s_nop 0")
    E.e(f"v_readfirstlane_b32 s{S_TMP3}, v{V_T3}")
    E.e("s_nop 3")
    E.e(f"s_lshr_b32 s{S_TMP3}, s{S_TMP3}, s{S_SHIFT}")
    E.e(f"s_and_b32 s{S_TMP3}, s{S_TMP3}, 4")
    E.e(f"s_cmp_lg_u32 s{S_TMP3}, 0")
    E.e("s_cbranch_scc0 .Lpoll")
    E.label(".Lready")
    E.e(f"s_mov_b32 s{S_SOFF}, 0x8000")
    E.e(f"buffer_load_dword v{V_T0}, v{V_WSOFF}, s[20:23], s{S_SOFF} offen sc1")
    E.e(f"buffer_load_dword v{V_T1}, v{V_WSOFF}, s[20:23], s{S_SOFF} offen offset:4 sc1")
    E.e(f"s_mov_b32 s{S_SOFF}, 0")
    for k in range(32):
        E.e(f"buffer_load_dwordx4 {vr(4 * k, 4)}, v{V_WSOFF}, s[20:23], s{S_SOFF} offen offset:{1024 * (k % 4)} sc1")
        if k % 4 == 3:
            E.e(f"s_add_u32 s{S_SOFF}, s{S_SOFF}, 0x1000")
    E.e("s_waitcnt vmcnt(32)")
    E.e(f"v_max_f32 v{V_T2}, v{V_M}, v{V_T1}")
    E.e(f"v_sub_f32 v{V_T3}, v{V_M}, v{V_T2}")
    E.e(f"v_sub_f32 v{V_T1}, v{V_T1}, v{V_T2}")
    E.e(f"v_mul_f32 v{V_T3}, s{S_C}, v{V_T3}")
    E.e(f"v_mul_f32 v{V_T1}, s{S_C}, v{V_T1}")
    E.e(f"v_exp_f32 v{V_T3}, v{V_T3}")
    E.e(f"v_exp_f32 v{V_T1}, v{V_T1}")
    E.e("s_nop 0")
    E.e(f"v_mul_f32 v{V_L}, v{V_L}, v{V_T3}")
    E.e(f"v_fma_f32 v{V_L}, v{V_T0}, v{V_T1}, v{V_L}")
    for k in range(32):
        E.e(f"s_waitcnt vmcnt({31 - k})")
        for r_ in range(4):
            i = 4 * k + r_
            E.e(f"v_accvgpr_read_b32 v{TMP + r_}, a{A_O + i}")
            E.e(f"v_mul_f32 v{TMP + r_}, v{TMP + r_}, v{V_T3}")
            E.e(f"v_fma_f32 v{TMP + r_}, v{i}, v{V_T1}, v{TMP + r_}")
            E.e(f"v_accvgpr_write_b32 a{A_O + i}, v{TMP + r_}")
    E.e(f"s_mov_b32 s{S_NSEG}, 1")
    E.e("s_branch .Lstore")

    for par in range(2):
        E.block(f"rare{par}")
        E.label(f".Lrare{par}")
        tile_max(par, V_T0, V_T1)
        E.e(f"v_max_f32 v{V_T0}, v{V_T0}, v{V_M}")
        E.e(f"v_sub_f32 v{V_T1}, v{V_M}, v{V_T0}")
        E.e(f"v_mul_f32 v{V_T1}, s{S_C}, v{V_T1}")
        E.e(f"v_exp_f32 v{V_ALPHA}, v{V_T1}")
        E.e(f"v_mov_b32 v{V_M}, v{V_T0}")
        E.e(f"v_mul_f32 v{V_NMC}, s{S_C}, v{V_M}")
        E.e(f"v_sub_f32 v{V_NMC}, 0, v{V_NMC}")
        E.e(f"v_mul_f32 v{V_L}, v{V_L}, v{V_ALPHA}")
        for i in range(0, 128, 4):
            for r_ in range(4):
                E.e(f"v_accvgpr_read_b32 v{TMP + 8 + r_}, a{A_O + i + r_}")
            for r_ in range(4):
                E.e(f"v_mul_f32 v{TMP + 8 + r_}, v{TMP + 8 + r_}, v{V_ALPHA}")
            for r_ in range(4):
                E.e(f"v_accvgpr_write_b32 a{A_O + i + r_}, v{TMP + 8 + r_}")
        run_ops(sm_stream(par, list(range(16)), first=True))
        E.e(f"v_add_f32 v{V_SA}, v{V_SA}, v{V_SB}")
        E.e(f"s_add_u32 s{S_RET}, s{S_RET}, 4")
        E.e(f"s_addc_u32 s{S_RET + 1}, s{S_RET + 1}, 0")
        E.e("s_nop 1")
        E.e(f"s_setpc_b64 s[{S_RET}:{S_RET + 1}]")

    E.block("end")
    E.label(".Lend")
    E.e("s_endpgm")


HEADER = """; Causal flash-attention forward, B=1 H=16 S=2048 D=256 bf16 (generated by work/gen.py)
; @launch grid=(256,1,1) block=(256,1,1) lds=131072
.amdgcn_target "amdgcn-amd-amdhsa--gfx950"
.text
.globl standalone__softmax_full_causal__prompt_kernel
.p2align 8
.type standalone__softmax_full_causal__prompt_kernel,@function
standalone__softmax_full_causal__prompt_kernel:
"""
FOOTER = """.section .rodata,"a"
.p2align 6
.amdhsa_kernel standalone__softmax_full_causal__prompt_kernel
  .amdhsa_next_free_vgpr 512
  .amdhsa_next_free_sgpr 96
  .amdhsa_accum_offset 256
  .amdhsa_group_segment_fixed_size 0
  .amdhsa_kernarg_size 48
  .amdhsa_user_sgpr_count 2
  .amdhsa_user_sgpr_kernarg_segment_ptr 1
  .amdhsa_system_sgpr_workgroup_id_x 1
.end_amdhsa_kernel
"""

if __name__ == "__main__":
    gen()
    for name in E.order:
        b = E.blocks[name]
        nb = []
        for l in b:
            if nb and l.endswith(" lds") and " m0," in nb[-1]:
                nb.append("s_nop 0")
            nb.append(l)
        E.blocks[name] = nb
    out = HEADER
    for name in E.order:
        out += f"; ---- {name}\n"
        for l in E.blocks[name]:
            out += ("" if l.endswith(":") else "    ") + l + "\n"
    out += FOOTER
    open(sys.argv[1], "w").write(out)
    import pickle
    pickle.dump((E.order, E.blocks), open("blocks.pkl", "wb"))
    n = sum(len(b) for b in E.blocks.values())
    print("instructions:", n, {k: len(v) for k, v in E.blocks.items()})
```

```python
import struct
import sys
import re

N0 = 18
N1 = 12
LK = 8
LV = 6
BAR_GAP = 28
BUDGET = 24
DMA_COST = 8
STAMP = 0
NODMA = 0
NOSM = 0
NOLDS = 0
PFD = 3
for a in sys.argv[2:]:
    k, v = a.split("=")
    globals()[k] = int(v)


def f2u(x):
    return struct.unpack("<I", struct.pack("<f", x))[0]


C_SCALE = 0.0625 * 1.4426950408889634
THR = 65536.0
NEGBIG = 0xF149F2CA

def S_(buf, b):
    return 32 * buf + 16 * b
P0 = 64
KF = 96
VF = 128
KA = 160
VA = 168
KD = 172
VD = 180
TMP = 184
V_L = 200
V_M = 201
V_NMC = 202
V_SA = 203
V_SB = 204
V_QREL = 207
V_THR = 208
V_NEG = 209
V_LANE = 210
V_T0 = 211
V_T1 = 212
V_T2 = 213
V_QOFF = 214
V_WSOFF = 215
V_ALPHA = 216
V_T3 = 217
V_THRC = 218
V_PF = 219
V_PFD = 220
EP = 0

A_O = 0
A_Q = 128
A_Q2 = 192

S_C = 28
S_WB = 29
S_KN = 30
S_VN = 31
S_ENDA = 32
S_STARTB = 33
S_ENDB = 34
S_OOB = 35
S_CNT = 36
S_KEY0 = 37
S_NSEG = 38
S_ACT = 39
S_RET = 40
S_MK = 42
S_QB = 50
S_T0 = 51
S_N = 52
S_QB2 = 53
S_T02 = 54
S_N2 = 55
S_ACT2 = 56
S_TMP = 57
S_TMP2 = 58
S_PID = 59
S_WAVE = 60
S_TMP3 = 61
S_SOFF = 62
S_SHIFT = 63
S_PFK = 66
S_PFV = 67
S_FIRST = 68
S_PUB = 69


class Em:
    def __init__(self):
        self.blocks = {}
        self.order = []
        self.cur = None
        self.ldsq = []

    def block(self, name):
        self.cur = []
        self.blocks[name] = self.cur
        self.order.append(name)

    def e(self, s):
        self.cur.append(s)

    def label(self, l):
        self.cur.append(l + ":")

    def ds(self, text, dst):
        self.e(text)
        self.ldsq.append(set(dst))
        assert len(self.ldsq) <= 15, "too many outstanding LDS ops"

    def need(self, regs):
        regs = set(regs)
        last = -1
        for i, d in enumerate(self.ldsq):
            if d & regs:
                last = i
        if last >= 0:
            n = len(self.ldsq) - 1 - last
            self.e(f"s_waitcnt lgkmcnt({n})")
            self.ldsq = self.ldsq[last + 1:]
            return True
        return False

    def lds_drain(self):
        self.ldsq = []

    def lds_drain_keep(self):
        pass


E = Em()


def vr(a, n):
    return f"v[{a}:{a + n - 1}]"


def ar(a, n):
    return f"a[{a}:{a + n - 1}]"


def kfrag(i):
    return KF + 4 * (i % 8)


def vfrag(i):
    return VF + 4 * (i % 8)


def k_read(i, slot):
    b, s = divmod(i, 16)
    off = slot * 32768 + b * 16384 + (s // 8) * 256
    d = kfrag(i)
    E.ds(f"ds_read_b128 {vr(d, 4)}, v{KA + s % 8} offset:{off}", range(d, d + 4))


def v_read(i, slot, half):
    s, j = divmod(i, 8)
    off = slot * 32768 + s * 8192 + (j // 4) * 256 + half * 4096
    d = vfrag(i) + 2 * half
    E.ds(f"ds_read_b64_tr_b16 {vr(d, 2)}, v{VA + j % 4} offset:{off}", range(d, d + 2))


def qk_mfma(i, sbuf):
    b, s = divmod(i, 16)
    regs = list(range(kfrag(i), kfrag(i) + 4))
    if i % 2 == 0 and i + 1 < 32:
        regs += list(range(kfrag(i + 1), kfrag(i + 1) + 4))
    E.need(regs)
    D = vr(S_(sbuf, b), 16)
    C = D if s > 0 else "0"
    E.e(f"v_mfma_f32_32x32x16_bf16 {D}, {vr(kfrag(i), 4)}, {ar(A_Q + 4 * s, 4)}, {C}")


def pv_mfma(i, pbuf):
    s, j = divmod(i, 8)
    regs = list(range(vfrag(i), vfrag(i) + 4))
    if i % 2 == 0 and i + 1 < 32:
        regs += list(range(vfrag(i + 1), vfrag(i + 1) + 4))
    E.need(regs)
    D = ar(A_O + 16 * j, 16)
    E.e(f"v_mfma_f32_32x32x16_bf16 {D}, {vr(vfrag(i), 4)}, {vr(P0 + 16 * pbuf + 4 * s, 4)}, {D}")


def dma_ops(kslot, vslot, pf=True):
    ops = []

    def m0(val):
        return (4, lambda: E.e(f"s_add_u32 m0, s{S_WB}, {val}"))

    def ld(voff, srd, soff, imm):
        if NODMA and E.cur is not E.blocks.get("setup"):
            return (0, lambda: None)
        return (DMA_COST, lambda: E.e(f"buffer_load_dwordx4 v{voff}, s[{srd}:{srd + 3}], s{soff} offen offset:{imm} lds"))

    for g in range(2):
        ops.append(m0(65536 + vslot * 32768 + 4096 * g))
        for jj in range(4):
            ops.append(ld(VD + 2 * g + (jj % 2), 12, S_VN, 1024 * jj))
    for g in range(2):
        ops.append(m0(kslot * 32768 + 4096 * g))
        for jj in range(4):
            ops.append(ld(KD + 4 * g + jj, 8, S_KN, 1024 * jj))
    ops.append((4, lambda: E.e(f"s_mov_b32 s{S_VN}, s{S_KN}")))
    ops.append(upd(S_KN))
    if pf and PFD:
        ops += pf_ops()
    return ops


def upd(sp):
    def f():
        E.e(f"s_add_u32 s{sp}, s{sp}, 0x8000")
        E.e(f"s_cmp_eq_u32 s{sp}, s{S_ENDA}")
        E.e(f"s_cselect_b32 s{sp}, s{S_STARTB}, s{sp}")
        E.e(f"s_cmp_eq_u32 s{sp}, s{S_ENDB}")
        E.e(f"s_cselect_b32 s{sp}, s{S_OOB}, s{sp}")
    return (20, f)


def pf_ops():
    return [(DMA_COST, lambda: E.e(f"buffer_load_dword v{V_PFD}, v{V_PF}, s[12:15], s{S_PFV} offen")),
            (DMA_COST, lambda: E.e(f"buffer_load_dword v{V_PFD + 1}, v{V_PF}, s[8:11], s{S_PFK} offen")),
            (4, lambda: E.e(f"s_mov_b32 s{S_PFV}, s{S_PFK}")),
            upd(S_PFK)]


def sm_stream(sbuf, pairs, first):
    ops = []
    n = len(pairs)
    st = {"first": first}

    def T(idx):
        return TMP + 2 * (idx % 4)

    def F(idx):
        k = pairs[idx]
        r = 32 * sbuf + 2 * k
        t = T(idx)
        ops.append((4, lambda: E.e(f"v_fma_f32 v{t}, v{r}, s{S_C}, v{V_NMC}")))
        ops.append((4, lambda: E.e(f"v_fma_f32 v{t + 1}, v{r + 1}, s{S_C}, v{V_NMC}")))

    def X(idx):
        t = T(idx)
        ops.append((8, lambda: E.e(f"v_exp_f32 v{t}, v{t}")))
        ops.append((8, lambda: E.e(f"v_exp_f32 v{t + 1}, v{t + 1}")))

    def A(idx):
        k = pairs[idx]
        t = T(idx)
        p = P0 + 16 * sbuf + k
        if st["first"]:
            st["first"] = False
            ops.append((4, lambda: E.e(f"v_mov_b32 v{V_SA}, v{t}")))
            ops.append((4, lambda: E.e(f"v_mov_b32 v{V_SB}, v{t + 1}")))
        else:
            ops.append((4, lambda: E.e(f"v_add_f32 v{V_SA}, v{V_SA}, v{t}")))
            ops.append((4, lambda: E.e(f"v_add_f32 v{V_SB}, v{V_SB}, v{t + 1}")))
        ops.append((4, lambda: E.e(f"v_cvt_pk_bf16_f32 v{p}, v{t}, v{t + 1}")))

    for i in range(n + 2):
        if i < n:
            F(i)
        if 1 <= i <= n:
            X(i - 1)
        if i >= 2:
            A(i - 2)
    if NOSM:
        return []
    return ops


def mask_ops(sbuf, b):
    ops = []
    for q in range(4):
        for r4 in range(4):
            r = 4 * q + r4
            o = 32 * b + 8 * q + r4
            ops.append((4, lambda o=o, r4=r4: E.e(f"v_cmp_lt_i32 s[{S_MK + 2 * r4}:{S_MK + 2 * r4 + 1}], v{V_THR}, {o}")))
        for r4 in range(4):
            r = 4 * q + r4
            reg = S_(sbuf, b) + r
            ops.append((4, lambda reg=reg, r4=r4: E.e(f"v_cndmask_b32 v{reg}, v{reg}, v{V_NEG}, s[{S_MK + 2 * r4}:{S_MK + 2 * r4 + 1}]")))
    return ops


def run_ops(ops):
    for c, f in ops:
        f()


def schedule(mf, fixed, stream, first_gap, last_gap):
    n = len(mf)
    free = []
    for g in range(n):
        c = sum(x[0] for x in fixed[g]) + 2
        free.append(max(0, BUDGET - c) if first_gap <= g <= last_gap else 0)
    T = sum(x[0] for x in stream)
    F = sum(free)
    scale = T / F if F > 0 else 0
    credit = 0.0
    si = 0
    for g in range(n):
        mf[g]()
        run_ops(fixed[g])
        if first_gap <= g <= last_gap:
            credit += free[g] * scale
            while si < len(stream) and (credit >= stream[si][0] * 0.5 or g == last_gap):
                credit -= stream[si][0]
                stream[si][1]()
                si += 1
    assert si == len(stream)


_rare_sites = []


def check_and_accumulate(par, tag):
    E.e(f"v_add_f32 v{V_SA}, v{V_SA}, v{V_SB}")
    E.e(f"v_cmp_nle_f32 vcc, v{V_SA}, v{V_THRC}")
    E.e("s_nop 3")
    E.e(f"s_cbranch_vccz .Lok_{tag}")
    E.e(f"s_getpc_b64 s[{S_RET}:{S_RET + 1}]")
    E.e(f"s_branch .Lrare{par}")
    E.label(f".Lok_{tag}")
    E.e(f"v_add_f32 v{V_L}, v{V_L}, v{V_SA}")


def b_tail_fixed(fixed, kslot_next, dma):
    def bar():
        E.e(f"s_waitcnt vmcnt({2 if PFD else 0}) lgkmcnt(0)")
        E.lds_drain()
        E.e("s_barrier")
    fixed[BAR_GAP].append((8, bar))
    ng = 32 - BAR_GAP
    idx = 0
    per = (LK + ng - 1) // ng
    for g in range(BAR_GAP, 32):
        for _ in range(per):
            if idx < LK:
                fixed[g].append((4, lambda i=idx: k_read(i, kslot_next)))
                idx += 1
    nd = 0
    for g in range(BAR_GAP, 32):
        for _ in range(2):
            if dma:
                fixed[g].append(dma.pop(0))
    return dma


NDMA_TAIL = 2 * (32 - BAR_GAP)


def phase_a(par, dma_rest, with_mfma=True, tag=""):
    nb = 1 - par
    mf = []
    fixed = [[] for _ in range(32)]
    for i in range(32):
        if with_mfma:
            mf.append(lambda i=i: qk_mfma(i, nb))
            if i + LK < 32:
                fixed[i].append((4, lambda i=i: k_read(i + LK, nb)))
        else:
            mf.append(lambda: None)
    g = 0
    for op in dma_rest:
        fixed[g].append(op)
        g += 1 if op[0] > 4 else 0
        g = min(g, 23)
    g0 = 32 - LV
    for k in range(LV):
        fixed[g0 + k - 1].append((4, lambda k=k: v_read(k, par, 0)))
        fixed[g0 + k - 1].append((4, lambda k=k: v_read(k, par, 1)))
    stream = sm_stream(par, list(range(N1 // 2, 16)), first=(N1 == 0))
    schedule(mf, fixed, stream, 0, 29)
    check_and_accumulate(par, tag)


def phase_b(par, masked, last):
    nb = 1 - par
    mf = [lambda i=i: pv_mfma(i, par) for i in range(32)]
    fixed = [[] for _ in range(32)]
    for i in range(32):
        if i + LV < 32:
            fixed[i].append((4, lambda i=i: v_read(i + LV, par, 0)))
            fixed[i].append((4, lambda i=i: v_read(i + LV, par, 1)))
    stream = []
    dma = []
    if not last:
        if masked:
            stream += mask_ops(nb, 0)
        stream += sm_stream(nb, list(range(0, N1 // 2)), first=True)
        if masked:
            stream += mask_ops(nb, 1)
        dma = dma_ops(nb, par)
        dma = b_tail_fixed(fixed, par, dma)
    schedule(mf, fixed, stream, 1 if not masked else 1, BAR_GAP - 1)
    return dma


def set_thr(off_tiles_from_end):
    E.e(f"s_add_u32 s{S_TMP}, s{S_T0}, s{S_N}")
    E.e(f"s_sub_u32 s{S_TMP}, s{S_TMP}, {off_tiles_from_end}")
    E.e(f"s_lshl_b32 s{S_TMP}, s{S_TMP}, 6")
    E.e(f"v_subrev_u32 v{V_THR}, s{S_TMP}, v{V_QREL}")


def iteration(par, masked, tag, dma_in):
    phase_a(par, dma_in, True, tag)
    return phase_b(par, masked, False)


def tile_max(sbuf, dst, t1):
    base = 32 * sbuf
    E.e(f"v_max3_f32 v{dst}, v{base}, v{base + 1}, v{base + 2}")
    E.e(f"v_max3_f32 v{t1}, v{base + 3}, v{base + 4}, v{base + 5}")
    r = 6
    acc = [dst, t1]
    k = 0
    while r + 1 < 32:
        E.e(f"v_max3_f32 v{acc[k]}, v{acc[k]}, v{base + r}, v{base + r + 1}")
        k ^= 1
        r += 2
    E.e(f"v_max_f32 v{dst}, v{dst}, v{t1}")
    E.e(f"v_mov_b32 v{t1}, v{dst}")
    E.e("s_nop 1")
    E.e(f"v_permlane32_swap_b32 v{dst}, v{t1}")
    E.e(f"v_max_f32 v{dst}, v{dst}, v{t1}")


def flag_addr():
    E.e(f"s_lshl_b32 s{S_TMP}, s{S_PID}, 2")
    E.e(f"s_add_u32 s{S_TMP}, s{S_TMP}, s{S_WAVE}")
    E.e(f"s_and_b32 s{S_SHIFT}, s{S_TMP}, 31")
    E.e(f"s_lshr_b32 s{S_TMP}, s{S_TMP}, 5")
    E.e(f"s_lshl_b32 s{S_TMP}, s{S_TMP}, 2")
    E.e(f"v_mov_b32 v{V_T2}, s{S_TMP}")
    E.e(f"s_lshl_b32 s{S_TMP2}, 1, s{S_SHIFT}")
    E.e(f"v_mov_b32 v{V_T3}, s{S_TMP2}")


def stamp(i, real=False):
    if not STAMP:
        return
    assert not E.ldsq or True
    E.e("s_memrealtime s[98:99]" if real else "s_memtime s[98:99]")
    E.e("s_waitcnt lgkmcnt(0)")
    E.lds_drain_keep()
    E.e(f"s_mov_b32 s{86 + i}, s98")


def gen():
    E.block("setup")
    E.e("s_cmp_ge_u32 s2, 256")
    E.e("s_cbranch_scc1 .Lend")
    stamp(0)
    stamp(1, True)
    E.e("s_load_dwordx4 s[4:7], s[0:1], 0")
    E.e("s_load_dwordx4 s[8:11], s[0:1], 16")
    E.e("s_load_dwordx4 s[12:15], s[0:1], 32")
    E.e(f"v_lshrrev_b32 v{V_T0}, 6, v0")
    E.e(f"v_and_b32 v{V_LANE}, 63, v0")
    E.e("s_nop 0")
    E.e(f"v_readfirstlane_b32 s{S_WAVE}, v{V_T0}")
    E.e("s_and_b32 s64, s2, 7")
    E.e("s_lshr_b32 s65, s2, 3")
    E.e("s_and_b32 s66, s65, 1")
    E.e("s_lshl_b32 s64, s64, 1")
    E.e("s_add_u32 s64, s64, s66")
    E.e("s_lshr_b32 s65, s65, 1")
    E.e("s_and_b32 s67, s65, 1")
    E.e("s_lshr_b32 s65, s65, 1")
    E.e(f"s_lshl_b32 s{S_PID}, s64, 3")
    E.e(f"s_add_u32 s{S_PID}, s{S_PID}, s65")
    E.e("s_lshl_b32 s68, s64, 20")
    E.e("s_waitcnt lgkmcnt(0)")
    E.e("s_mov_b32 s70, s6"); E.e("s_mov_b32 s71, s7")
    E.e("s_mov_b32 s72, s8"); E.e("s_mov_b32 s73, s9")
    E.e("s_mov_b32 s74, s10"); E.e("s_mov_b32 s75, s11")
    E.e("s_mov_b32 s76, s12"); E.e("s_mov_b32 s77, s13")
    E.e("s_mov_b32 s78, s14"); E.e("s_mov_b32 s79, s15")
    for (srd, lo, hi) in ((4, 4, 5), (8, 70, 71), (12, 72, 73), (16, 74, 75)):
        E.e(f"s_add_u32 s{srd}, s{lo}, s68")
        E.e(f"s_addc_u32 s{srd + 1}, s{hi}, 0")
        E.e(f"s_and_b32 s{srd + 1}, s{srd + 1}, 0xffff")
        E.e(f"s_mov_b32 s{srd + 2}, 0x100000")
        E.e(f"s_mov_b32 s{srd + 3}, 0x00020000")
    E.e("s_mov_b32 s20, s78"); E.e("s_and_b32 s21, s79, 0xffff")
    E.e("s_mov_b32 s22, 0x10000000"); E.e("s_mov_b32 s23, 0x00020000")
    E.e("s_mov_b32 s24, s76"); E.e("s_and_b32 s25, s77, 0xffff")
    E.e("s_mov_b32 s26, 256"); E.e("s_mov_b32 s27, 0x00020000")
    E.e(f"s_mov_b32 s{S_C}, {f2u(C_SCALE):#x}")
    E.e(f"s_lshl_b32 s{S_WB}, s{S_WAVE}, 13")
    E.e(f"s_mov_b32 s{S_OOB}, 0x40000000")
    E.e("s_lshl_b32 s69, s65, 1")
    E.e("s_sub_u32 s80, 32, s69")
    E.e("s_add_u32 s81, s69, 2")
    E.e("s_sub_u32 s82, 15, s65")
    E.e("s_lshl_b32 s82, s82, 16")
    E.e("s_lshl_b32 s83, s65, 16")
    E.e(f"s_min_u32 s84, s80, {N0}")
    E.e("s_sub_u32 s85, s80, s84")
    E.e("s_cmp_eq_u32 s67, 0")
    E.e("s_cbranch_scc0 .Lwg1")
    E.e(f"s_mov_b32 s{S_QB}, s82")
    E.e(f"s_mov_b32 s{S_T0}, 0")
    E.e(f"s_mov_b32 s{S_N}, s84")
    E.e(f"s_mov_b32 s{S_NSEG}, 1")
    E.e(f"s_cmp_lg_u32 s85, 0")
    E.e(f"s_cselect_b32 s{S_ACT}, 1, 0")
    E.e(f"s_mov_b32 s{S_ENDA}, 1")
    E.e(f"s_mov_b32 s{S_STARTB}, 1")
    E.e(f"s_lshl_b32 s{S_ENDB}, s84, 15")
    E.e("s_branch .Lsegdone")
    E.label(".Lwg1")
    E.e(f"s_cmp_lg_u32 s85, 0")
    E.e(f"s_cselect_b32 s{S_NSEG}, 2, 1")
    E.e(f"s_cbranch_scc0 .Lwg1_single")
    E.e(f"s_mov_b32 s{S_QB}, s82")
    E.e(f"s_mov_b32 s{S_T0}, s84")
    E.e(f"s_mov_b32 s{S_N}, s85")
    E.e(f"s_mov_b32 s{S_ACT}, 2")
    E.e(f"s_mov_b32 s{S_QB2}, s83")
    E.e(f"s_mov_b32 s{S_T02}, 0")
    E.e(f"s_mov_b32 s{S_N2}, s81")
    E.e(f"s_mov_b32 s{S_ACT2}, 0")
    E.e(f"s_lshl_b32 s{S_ENDA}, s80, 15")
    E.e(f"s_mov_b32 s{S_STARTB}, 0")
    E.e(f"s_lshl_b32 s{S_ENDB}, s81, 15")
    E.e("s_branch .Lsegdone")
    E.label(".Lwg1_single")
    E.e(f"s_mov_b32 s{S_QB}, s83")
    E.e(f"s_mov_b32 s{S_T0}, 0")
    E.e(f"s_mov_b32 s{S_N}, s81")
    E.e(f"s_mov_b32 s{S_ACT}, 0")
    E.e(f"s_mov_b32 s{S_ENDA}, 1")
    E.e(f"s_mov_b32 s{S_STARTB}, 1")
    E.e(f"s_lshl_b32 s{S_ENDB}, s81, 15")
    E.label(".Lsegdone")
    L = V_LANE
    E.e(f"v_and_b32 v{V_T0}, 31, v{L}")
    E.e(f"v_lshrrev_b32 v{V_T1}, 5, v{L}")
    E.e(f"s_lshl_b32 s{S_TMP}, s{S_WAVE}, 5")
    E.e(f"v_add_u32 v{V_T2}, s{S_TMP}, v{V_T0}")
    E.e(f"v_lshlrev_b32 v{V_QOFF}, 9, v{V_T2}")
    E.e(f"v_lshl_add_u32 v{V_QOFF}, v{V_T1}, 4, v{V_QOFF}")
    E.e(f"v_and_b32 v{V_T3}, 15, v{L}")
    for j in range(8):
        E.e(f"v_add_u32 v{KA + j}, {2 * j}, v{V_T1}")
        E.e(f"v_xor_b32 v{KA + j}, v{KA + j}, v{V_T3}")
        E.e(f"v_lshlrev_b32 v{KA + j}, 4, v{KA + j}")
        E.e(f"v_lshl_add_u32 v{KA + j}, v{V_T0}, 9, v{KA + j}")
    E.e(f"v_bfe_u32 v{TMP}, v{L}, 2, 2")
    E.e(f"v_and_b32 v{TMP + 1}, 3, v{L}")
    E.e(f"v_bfe_u32 v{TMP + 2}, v{L}, 4, 1")
    E.e(f"v_lshl_add_u32 v{TMP + 3}, v{V_T1}, 2, v{TMP}")
    E.e(f"v_lshlrev_b32 v{TMP + 3}, 9, v{TMP + 3}")
    E.e(f"v_lshl_add_u32 v{TMP + 3}, v{TMP + 2}, 5, v{TMP + 3}")
    E.e(f"v_lshl_add_u32 v{TMP + 3}, v{TMP + 1}, 3, v{TMP + 3}")
    E.e(f"v_add_u32 v{TMP + 3}, 0x10000, v{TMP + 3}")
    for i in range(4):
        E.e(f"v_xor_b32 v{VA + i}, {i}, v{TMP}")
        E.e(f"v_lshl_add_u32 v{VA + i}, v{VA + i}, 6, v{TMP + 3}")
    E.e(f"v_lshl_add_u32 v{TMP + 4}, v{V_T1}, 9, s{S_WB}")
    for j in range(8):
        E.e(f"v_add_u32 v{KD + j}, {2 * j % 16}, v{V_T1}")
        E.e(f"v_xor_b32 v{KD + j}, v{KD + j}, v{V_T0}")
        E.e(f"v_lshl_add_u32 v{KD + j}, v{KD + j}, 4, v{TMP + 4}")
        if j >= 4:
            E.e(f"v_add_u32 v{KD + j}, 0x1000, v{KD + j}")
    for g in range(2):
        for o in range(2):
            d = VD + 2 * g + o
            E.e(f"v_add_u32 v{d}, {2 * o}, v{V_T1}")
            E.e(f"v_lshlrev_b32 v{d}, 2, v{d}")
            E.e(f"v_xor_b32 v{d}, v{d}, v{V_T0}")
            E.e(f"v_lshl_add_u32 v{d}, v{d}, 4, v{TMP + 4}")
            if g:
                E.e(f"v_add_u32 v{d}, 0x1000, v{d}")
    E.e(f"v_mov_b32 v{V_NEG}, {NEGBIG:#x}")
    E.e(f"v_mov_b32 v{V_THRC}, {f2u(THR):#x}")
    E.e(f"s_mul_i32 s{S_TMP}, s{S_WAVE}, 0x9000")
    E.e(f"s_lshl_b32 s{S_TMP2}, s{S_PID}, 18")
    E.e(f"s_add_u32 s{S_TMP}, s{S_TMP}, s{S_TMP2}")
    E.e(f"v_lshl_add_u32 v{V_WSOFF}, v{L}, 4, s{S_TMP}")
    E.e(f"v_lshl_add_u32 v{V_PF}, v{L}, 7, s{S_WB}")
    E.e(f"s_lshl_b32 s{S_KN}, s{S_T0}, 15")
    E.e(f"s_mov_b32 s{S_VN}, s{S_KN}")
    E.e(f"s_mov_b32 s{S_FIRST}, 1")
    E.e(f"s_mov_b32 s{S_PUB}, 0")
    for s_ in range(16):
        E.e(f"buffer_load_dwordx4 {ar(A_Q + 4 * s_, 4)}, v{V_QOFF}, s[4:7], s{S_QB} offen offset:{32 * s_}")
    d0 = dma_ops(0, 0, pf=False)
    run_ops(d0[10:])
    run_ops(d0[:10])
    d1 = dma_ops(1, 1, pf=False)[10:]
    run_ops(d1)
    nyoung = 16
    if PFD:
        E.e(f"s_mov_b32 s{S_PFV}, s{S_VN}")
        E.e(f"s_mov_b32 s{S_PFK}, s{S_KN}")
        for _ in range(PFD):
            run_ops(pf_ops())
        nyoung += 2 * PFD
    E.e(f"s_waitcnt vmcnt({nyoung})")
    E.e("s_barrier")

    E.block("prologue")
    E.label(".Lseg")
    E.e(f"s_lshr_b32 s{S_TMP}, s{S_QB}, 9")
    E.e(f"v_lshrrev_b32 v{V_T0}, 9, v{V_QOFF}")
    E.e(f"v_add_u32 v{V_QREL}, s{S_TMP}, v{V_T0}")
    E.e(f"v_lshrrev_b32 v{V_T1}, 5, v{V_LANE}")
    E.e(f"v_lshlrev_b32 v{V_T1}, 2, v{V_T1}")
    E.e(f"v_sub_u32 v{V_QREL}, v{V_QREL}, v{V_T1}")
    for i in range(128):
        E.e(f"v_accvgpr_write_b32 a{A_O + i}, 0")
    E.e(f"v_mov_b32 v{V_L}, 0")
    stamp(2)
    for i in range(LK):
        k_read(i, 0)
    for i in range(32):
        qk_mfma(i, 0)
        if i + LK < 32:
            k_read(i + LK, 0)
    E.e(f"s_lshl_b32 s{S_TMP}, s{S_T0}, 6")
    E.e(f"v_subrev_u32 v{V_THR}, s{S_TMP}, v{V_QREL}")
    E.e("s_nop 7")
    E.e("s_nop 3")
    run_ops(mask_ops(0, 0))
    run_ops(mask_ops(0, 1))
    tile_max(0, V_M, V_T0)
    E.e(f"v_mul_f32 v{V_NMC}, s{S_C}, v{V_M}")
    E.e(f"v_sub_f32 v{V_NMC}, 0, v{V_NMC}")
    run_ops(sm_stream(0, list(range(0, N1 // 2)), first=True))
    E.e(f"s_cmp_eq_u32 s{S_FIRST}, 1")
    E.e("s_cbranch_scc1 .Lpro1")
    E.e("s_waitcnt vmcnt(0)")
    E.e(f"s_cmp_eq_u32 s{S_PUB}, 1")
    E.e("s_cbranch_scc0 .Lpro1")
    flag_addr()
    E.e("s_mov_b64 exec, 1")
    E.e(f"buffer_atomic_or v{V_T3}, v{V_T2}, s[24:27], 0 offen sc1")
    E.e("s_mov_b64 exec, -1")
    E.label(".Lpro1")
    E.e(f"s_waitcnt vmcnt({2 * PFD}) lgkmcnt(0)")
    E.lds_drain()
    E.e("s_barrier")
    stamp(3)
    E.e(f"s_cmp_eq_u32 s{S_NSEG}, 2")
    E.e("s_cbranch_scc0 .Lpro2")
    for s_ in range(16):
        E.e(f"buffer_load_dwordx4 {ar(A_Q2 + 4 * s_, 4)}, v{V_QOFF}, s[4:7], s{S_QB2} offen offset:{32 * s_}")
    E.label(".Lpro2")
    for i in range(LK):
        k_read(i, 1)
    dma = dma_ops(0, 1)
    run_ops(dma[:NDMA_TAIL])
    dma_rest_even = dma[NDMA_TAIL:]
    entry_q = list(E.ldsq)
    E.e(f"s_cmp_eq_u32 s{S_N}, 2")
    E.e("s_cbranch_scc1 .Lt0m")
    E.e(f"s_sub_u32 s{S_CNT}, s{S_N}, 2")
    E.e(f"s_lshr_b32 s{S_CNT}, s{S_CNT}, 1")

    E.block("iter0")
    E.label(".Lloop")
    r = iteration(0, False, "i0", dma_ops(0, 1)[NDMA_TAIL:])
    assert list(E.ldsq) == entry_q
    E.e(f"s_sub_u32 s{S_CNT}, s{S_CNT}, 1")
    E.e(f"s_cmp_eq_u32 s{S_CNT}, 0")
    E.e("s_cbranch_scc1 .Lt1m_pre")
    E.block("iter1")
    iteration(1, False, "i1", dma_ops(1, 0)[NDMA_TAIL:])
    assert list(E.ldsq) == entry_q
    E.e("s_branch .Lloop")
    E.block("iter1m")
    E.label(".Lt1m_pre")
    set_thr(2)
    iteration(1, True, "i1m", dma_ops(1, 0)[NDMA_TAIL:])
    assert list(E.ldsq) == entry_q
    E.block("iter0m")
    E.label(".Lt0m")
    set_thr(1)
    iteration(0, True, "i0m", dma_ops(0, 1)[NDMA_TAIL:])
    assert list(E.ldsq) == entry_q
    E.block("final1")
    E.e("s_waitcnt lgkmcnt(0)")
    E.lds_drain()
    phase_a(1, dma_ops(1, 0)[NDMA_TAIL:], with_mfma=False, tag="f1")
    phase_b(1, False, True)
    E.e("s_waitcnt lgkmcnt(0)")
    E.lds_drain()

    E.block("epilogue")
    stamp(4)
    E.e(f"v_mov_b32 v{V_T0}, v{V_L}")
    E.e("s_nop 1")
    E.e(f"v_permlane32_swap_b32 v{V_L}, v{V_T0}")
    E.e(f"v_add_f32 v{V_L}, v{V_L}, v{V_T0}")
    E.e(f"s_cmp_eq_u32 s{S_ACT}, 1")
    E.e("s_cbranch_scc1 .Lcombine")
    E.e(f"s_cmp_eq_u32 s{S_ACT}, 2")
    E.e("s_cbranch_scc1 .Lpublish")
    E.label(".Lstore")
    E.e(f"v_rcp_f32 v{V_ALPHA}, v{V_L}")
    E.e("s_nop 7")
    E.e("s_nop 3")
    for j in range(8):
        x = EP + 32 * (j % 2)
        for r_ in range(16):
            E.e(f"v_accvgpr_read_b32 v{x + r_}, a{A_O + 16 * j + r_}")
        for r_ in range(16):
            E.e(f"v_mul_f32 v{x + r_}, v{x + r_}, v{V_ALPHA}")
        for k in range(8):
            E.e(f"v_cvt_pk_bf16_f32 v{x + 16 + k}, v{x + 2 * k}, v{x + 2 * k + 1}")
        E.e("s_nop 1")
        for gp in range(2):
            y = x + 16 + 4 * gp
            E.e(f"v_permlane32_swap_b32 v{y}, v{y + 2}")
            E.e(f"v_permlane32_swap_b32 v{y + 1}, v{y + 3}")
        for gp in range(2):
            y = x + 16 + 4 * gp
            E.e(f"buffer_store_dwordx4 {vr(y, 4)}, v{V_QOFF}, s[16:19], s{S_QB} offen offset:{64 * j + 32 * gp}")
    stamp(5)
    E.e(f"s_cmp_eq_u32 s{S_NSEG}, 2")
    E.e("s_cbranch_scc0 .Lfin")
    if STAMP:
        for i in range(4):
            E.e(f"s_mov_b32 s{86 + 6 + i}, s{86 + 2 + i}")
    E.label(".Lswitch")
    E.e(f"s_mov_b32 s{S_FIRST}, 0")
    E.e(f"s_mov_b32 s{S_NSEG}, 1")
    E.e(f"s_mov_b32 s{S_QB}, s{S_QB2}")
    E.e(f"s_mov_b32 s{S_T0}, s{S_T02}")
    E.e(f"s_mov_b32 s{S_N}, s{S_N2}")
    E.e(f"s_mov_b32 s{S_ACT}, s{S_ACT2}")
    for i in range(64):
        E.e(f"v_accvgpr_mov_b32 a{A_Q + i}, a{A_Q2 + i}")
    E.e("s_branch .Lseg")

    E.block("combine")
    E.label(".Lpublish")
    E.e("s_nop 7")
    E.e(f"s_mov_b32 s{S_SOFF}, 0")
    for k in range(32):
        E.e(f"buffer_store_dwordx4 {ar(A_O + 4 * k, 4)}, v{V_WSOFF}, s[20:23], s{S_SOFF} offen offset:{1024 * (k % 4)} sc1")
        if k % 4 == 3:
            E.e(f"s_add_u32 s{S_SOFF}, s{S_SOFF}, 0x1000")
    E.e(f"buffer_store_dword v{V_L}, v{V_WSOFF}, s[20:23], s{S_SOFF} offen sc1")
    E.e(f"buffer_store_dword v{V_M}, v{V_WSOFF}, s[20:23], s{S_SOFF} offen offset:4 sc1")
    E.e(f"s_mov_b32 s{S_PUB}, 1")
    if STAMP:
        stamp(5)
        for i in range(4):
            E.e(f"s_mov_b32 s{86 + 6 + i}, s{86 + 2 + i}")
    E.e("s_branch .Lswitch")
    E.label(".Lcombine")
    flag_addr()
    E.label(".Lpoll")
    E.e(f"buffer_load_dword v{V_T3}, v{V_T2}, s[24:27], 0 offen sc0 sc1")
    E.e("s_waitcnt vmcnt(0)")
    E.e(f"v_readfirstlane_b32 s{S_TMP3}, v{V_T3}")
    E.e("s_nop 3")
    E.e(f"s_lshr_b32 s{S_TMP3}, s{S_TMP3}, s{S_SHIFT}")
    E.e(f"s_and_b32 s{S_TMP3}, s{S_TMP3}, 1")
    E.e(f"s_cmp_lg_u32 s{S_TMP3}, 0")
    E.e("s_cbranch_scc1 .Lready")
    E.e("s_sleep 8")
    E.e("s_branch .Lpoll")
    E.label(".Lready")
    E.e(f"s_mov_b32 s{S_SOFF}, 0x8000")
    E.e(f"buffer_load_dword v{V_T0}, v{V_WSOFF}, s[20:23], s{S_SOFF} offen sc1")
    E.e(f"buffer_load_dword v{V_T1}, v{V_WSOFF}, s[20:23], s{S_SOFF} offen offset:4 sc1")
    E.e(f"s_mov_b32 s{S_SOFF}, 0")
    for k in range(32):
        E.e(f"buffer_load_dwordx4 {vr(4 * k, 4)}, v{V_WSOFF}, s[20:23], s{S_SOFF} offen offset:{1024 * (k % 4)} sc1")
        if k % 4 == 3:
            E.e(f"s_add_u32 s{S_SOFF}, s{S_SOFF}, 0x1000")
    E.e("s_waitcnt vmcnt(32)")
    E.e(f"v_max_f32 v{V_T2}, v{V_M}, v{V_T1}")
    E.e(f"v_sub_f32 v{V_T3}, v{V_M}, v{V_T2}")
    E.e(f"v_sub_f32 v{V_T1}, v{V_T1}, v{V_T2}")
    E.e(f"v_mul_f32 v{V_T3}, s{S_C}, v{V_T3}")
    E.e(f"v_mul_f32 v{V_T1}, s{S_C}, v{V_T1}")
    E.e(f"v_exp_f32 v{V_T3}, v{V_T3}")
    E.e(f"v_exp_f32 v{V_T1}, v{V_T1}")
    E.e("s_nop 0")
    E.e(f"v_mul_f32 v{V_L}, v{V_L}, v{V_T3}")
    E.e(f"v_fma_f32 v{V_L}, v{V_T0}, v{V_T1}, v{V_L}")
    for k in range(32):
        E.e(f"s_waitcnt vmcnt({31 - k})")
        for r_ in range(4):
            i = 4 * k + r_
            E.e(f"v_accvgpr_read_b32 v{TMP + r_}, a{A_O + i}")
            E.e(f"v_mul_f32 v{TMP + r_}, v{TMP + r_}, v{V_T3}")
            E.e(f"v_fma_f32 v{TMP + r_}, v{i}, v{V_T1}, v{TMP + r_}")
            E.e(f"v_accvgpr_write_b32 a{A_O + i}, v{TMP + r_}")
    E.e(f"s_mov_b32 s{S_NSEG}, 1")
    E.e("s_branch .Lstore")

    for par in range(2):
        E.block(f"rare{par}")
        E.label(f".Lrare{par}")
        tile_max(par, V_T0, V_T1)
        E.e(f"v_max_f32 v{V_T0}, v{V_T0}, v{V_M}")
        E.e(f"v_sub_f32 v{V_T1}, v{V_M}, v{V_T0}")
        E.e(f"v_mul_f32 v{V_T1}, s{S_C}, v{V_T1}")
        E.e(f"v_exp_f32 v{V_ALPHA}, v{V_T1}")
        E.e(f"v_mov_b32 v{V_M}, v{V_T0}")
        E.e(f"v_mul_f32 v{V_NMC}, s{S_C}, v{V_M}")
        E.e(f"v_sub_f32 v{V_NMC}, 0, v{V_NMC}")
        E.e(f"v_mul_f32 v{V_L}, v{V_L}, v{V_ALPHA}")
        for i in range(0, 128, 4):
            for r_ in range(4):
                E.e(f"v_accvgpr_read_b32 v{TMP + 8 + r_}, a{A_O + i + r_}")
            for r_ in range(4):
                E.e(f"v_mul_f32 v{TMP + 8 + r_}, v{TMP + 8 + r_}, v{V_ALPHA}")
            for r_ in range(4):
                E.e(f"v_accvgpr_write_b32 a{A_O + i + r_}, v{TMP + 8 + r_}")
        run_ops(sm_stream(par, list(range(16)), first=True))
        E.e(f"v_add_f32 v{V_SA}, v{V_SA}, v{V_SB}")
        E.e(f"s_add_u32 s{S_RET}, s{S_RET}, 4")
        E.e(f"s_addc_u32 s{S_RET + 1}, s{S_RET + 1}, 0")
        E.e("s_nop 1")
        E.e(f"s_setpc_b64 s[{S_RET}:{S_RET + 1}]")

    E.block("end")
    E.label(".Lfin")
    if STAMP:
        E.e("s_waitcnt vmcnt(0)")
        stamp(10)
        stamp(11, True)
        E.e("s_lshl_b32 s64, s2, 2")
        E.e(f"s_add_u32 s64, s64, s{S_WAVE}")
        E.e("s_lshl_b32 s64, s64, 6")
        E.e("s_add_u32 s64, s64, 0x8000000")
        E.e("v_mov_b32 v1, s64")
        E.e("s_mov_b64 exec, 1")
        for i in range(12):
            E.e(f"v_mov_b32 v2, s{86 + i}")
            E.e(f"buffer_store_dword v2, v1, s[20:23], 0 offen offset:{4 * i}")
            E.e("s_nop 1")
        E.e("s_waitcnt vmcnt(0)")
    E.label(".Lend")
    E.e("s_endpgm")


HEADER = """; Causal flash-attention forward, B=1 H=16 S=2048 D=256 bf16 (generated by work/gen.py)
; @launch grid=(256,1,1) block=(256,1,1) lds=131072
.amdgcn_target "amdgcn-amd-amdhsa--gfx950"
.text
.globl standalone__softmax_full_causal__prompt_kernel
.p2align 8
.type standalone__softmax_full_causal__prompt_kernel,@function
standalone__softmax_full_causal__prompt_kernel:
"""
FOOTER = """.section .rodata,"a"
.p2align 6
.amdhsa_kernel standalone__softmax_full_causal__prompt_kernel
  .amdhsa_next_free_vgpr 512
  .amdhsa_next_free_sgpr 102
  .amdhsa_accum_offset 256
  .amdhsa_group_segment_fixed_size 0
  .amdhsa_kernarg_size 48
  .amdhsa_user_sgpr_count 2
  .amdhsa_user_sgpr_kernarg_segment_ptr 1
  .amdhsa_system_sgpr_workgroup_id_x 1
.end_amdhsa_kernel
"""

if __name__ == "__main__":
    gen()
    for name in E.order:
        b = E.blocks[name]
        nb = []
        for l in b:
            if nb and l.endswith(" lds") and " m0," in nb[-1]:
                nb.append("s_nop 0")
            nb.append(l)
        E.blocks[name] = nb
    out = HEADER
    for name in E.order:
        out += f"; ---- {name}\n"
        for l in E.blocks[name]:
            out += ("" if l.endswith(":") else "    ") + l + "\n"
    out += FOOTER
    open(sys.argv[1], "w").write(out)
    import pickle
    pickle.dump((E.order, E.blocks), open("blocks.pkl", "wb"))
    n = sum(len(b) for b in E.blocks.values())
    print("instructions:", n, {k: len(v) for k, v in E.blocks.items()})
```

```python
import struct
import sys
import re

N0 = 18
N1 = 12
LK = 8
LV = 6
BAR_GAP = 28
BUDGET = 24
DMA_COST = 8
STAMP = 0
NODMA = 0
NOSM = 0
NOLDS = 0
FIXPTR = 0
BULK = 0
STAMP2 = 0
DMA_TAILPG = 1
DMA_STRIDE = 2
PFD = 3
for a in sys.argv[2:]:
    k, v = a.split("=")
    globals()[k] = int(v)


def f2u(x):
    return struct.unpack("<I", struct.pack("<f", x))[0]


C_SCALE = 0.0625 * 1.4426950408889634
THR = 65536.0
NEGBIG = 0xF149F2CA

def S_(buf, b):
    return 32 * buf + 16 * b
P0 = 64
KF = 96
VF = 128
KA = 160
VA = 168
KD = 172
VD = 180
TMP = 184
V_L = 200
V_M = 201
V_NMC = 202
V_SA = 203
V_SB = 204
V_QREL = 207
V_THR = 208
V_NEG = 209
V_LANE = 210
V_T0 = 211
V_T1 = 212
V_T2 = 213
V_QOFF = 214
V_WSOFF = 215
V_ALPHA = 216
V_T3 = 217
V_THRC = 218
V_PF = 219
V_PFD = 220
EP = 0

A_O = 0
A_Q = 128
A_Q2 = 192

S_C = 28
S_WB = 29
S_KN = 30
S_VN = 31
S_ENDA = 32
S_STARTB = 33
S_ENDB = 34
S_OOB = 35
S_CNT = 36
S_KEY0 = 37
S_NSEG = 38
S_ACT = 39
S_RET = 40
S_MK = 42
S_QB = 50
S_T0 = 51
S_N = 52
S_QB2 = 53
S_T02 = 54
S_N2 = 55
S_ACT2 = 56
S_TMP = 57
S_TMP2 = 58
S_PID = 59
S_WAVE = 60
S_TMP3 = 61
S_SOFF = 62
S_SHIFT = 63
S_PFK = 66
S_PFV = 67
S_FIRST = 68
S_PUB = 69


class Em:
    def __init__(self):
        self.blocks = {}
        self.order = []
        self.cur = None
        self.ldsq = []

    def block(self, name):
        self.cur = []
        self.blocks[name] = self.cur
        self.order.append(name)

    def e(self, s):
        self.cur.append(s)

    def label(self, l):
        self.cur.append(l + ":")

    def ds(self, text, dst):
        self.e(text)
        self.ldsq.append(set(dst))
        assert len(self.ldsq) <= 15, "too many outstanding LDS ops"

    def need(self, regs):
        regs = set(regs)
        last = -1
        for i, d in enumerate(self.ldsq):
            if d & regs:
                last = i
        if last >= 0:
            n = len(self.ldsq) - 1 - last
            self.e(f"s_waitcnt lgkmcnt({n})")
            self.ldsq = self.ldsq[last + 1:]
            return True
        return False

    def lds_drain(self):
        self.ldsq = []

    def lds_drain_keep(self):
        pass


E = Em()


def vr(a, n):
    return f"v[{a}:{a + n - 1}]"


def ar(a, n):
    return f"a[{a}:{a + n - 1}]"


def kfrag(i):
    return KF + 4 * (i % 8)


def vfrag(i):
    return VF + 4 * (i % 8)


def k_read(i, slot):
    b, s = divmod(i, 16)
    off = slot * 32768 + b * 16384 + (s // 8) * 256
    d = kfrag(i)
    E.ds(f"ds_read_b128 {vr(d, 4)}, v{KA + s % 8} offset:{off}", range(d, d + 4))


def v_read(i, slot, half):
    s, j = divmod(i, 8)
    off = slot * 32768 + s * 8192 + (j // 4) * 256 + half * 4096
    d = vfrag(i) + 2 * half
    E.ds(f"ds_read_b64_tr_b16 {vr(d, 2)}, v{VA + j % 4} offset:{off}", range(d, d + 2))


def qk_mfma(i, sbuf):
    b, s = divmod(i, 16)
    regs = list(range(kfrag(i), kfrag(i) + 4))
    if i % 2 == 0 and i + 1 < 32:
        regs += list(range(kfrag(i + 1), kfrag(i + 1) + 4))
    E.need(regs)
    D = vr(S_(sbuf, b), 16)
    C = D if s > 0 else "0"
    E.e(f"v_mfma_f32_32x32x16_bf16 {D}, {vr(kfrag(i), 4)}, {ar(A_Q + 4 * s, 4)}, {C}")


def pv_mfma(i, pbuf):
    s, j = divmod(i, 8)
    regs = list(range(vfrag(i), vfrag(i) + 4))
    if i % 2 == 0 and i + 1 < 32:
        regs += list(range(vfrag(i + 1), vfrag(i + 1) + 4))
    E.need(regs)
    D = ar(A_O + 16 * j, 16)
    E.e(f"v_mfma_f32_32x32x16_bf16 {D}, {vr(vfrag(i), 4)}, {vr(P0 + 16 * pbuf + 4 * s, 4)}, {D}")


def dma_ops(kslot, vslot, pf=True):
    ops = []

    def m0(val):
        return (4, lambda: E.e(f"s_add_u32 m0, s{S_WB}, {val}"))

    def ld(voff, srd, soff, imm):
        if NODMA and E.cur is not E.blocks.get("setup"):
            return (0, lambda: None)
        return (DMA_COST, lambda: E.e(f"buffer_load_dwordx4 v{voff}, s[{srd}:{srd + 3}], s{soff} offen offset:{imm} lds"))

    for g in range(2):
        ops.append(m0(65536 + vslot * 32768 + 4096 * g))
        for jj in range(4):
            ops.append(ld(VD + 2 * g + (jj % 2), 12, S_VN, 1024 * jj))
    for g in range(2):
        ops.append(m0(kslot * 32768 + 4096 * g))
        for jj in range(4):
            ops.append(ld(KD + 4 * g + jj, 8, S_KN, 1024 * jj))
    ops.append((4, lambda: E.e(f"s_mov_b32 s{S_VN}, s{S_KN}")))
    ops.append(upd(S_KN))
    if pf and PFD:
        ops += pf_ops()
    return ops


def upd(sp):
    def f():
        if FIXPTR:
            return
        E.e(f"s_add_u32 s{sp}, s{sp}, 0x8000")
        E.e(f"s_cmp_eq_u32 s{sp}, s{S_ENDA}")
        E.e(f"s_cselect_b32 s{sp}, s{S_STARTB}, s{sp}")
        E.e(f"s_cmp_eq_u32 s{sp}, s{S_ENDB}")
        E.e(f"s_cselect_b32 s{sp}, s{S_OOB}, s{sp}")
    return (20, f)


def pf_ops():
    return [(DMA_COST, lambda: E.e(f"buffer_load_dword v{V_PFD}, v{V_PF}, s[12:15], s{S_PFK} offen")),
            (DMA_COST, lambda: E.e(f"buffer_load_dword v{V_PFD + 1}, v{V_PF}, s[8:11], s{S_PFK} offen")),
            (4, lambda: E.e(f"s_add_u32 s{S_PFK}, s{S_PFK}, 0x8000"))]


def sm_stream(sbuf, pairs, first):
    ops = []
    n = len(pairs)
    st = {"first": first}

    def T(idx):
        return TMP + 2 * (idx % 4)

    def F(idx):
        k = pairs[idx]
        r = 32 * sbuf + 2 * k
        t = T(idx)
        ops.append((4, lambda: E.e(f"v_fma_f32 v{t}, v{r}, s{S_C}, v{V_NMC}")))
        ops.append((4, lambda: E.e(f"v_fma_f32 v{t + 1}, v{r + 1}, s{S_C}, v{V_NMC}")))

    def X(idx):
        t = T(idx)
        ops.append((8, lambda: E.e(f"v_exp_f32 v{t}, v{t}")))
        ops.append((8, lambda: E.e(f"v_exp_f32 v{t + 1}, v{t + 1}")))

    def A(idx):
        k = pairs[idx]
        t = T(idx)
        p = P0 + 16 * sbuf + k
        if st["first"]:
            st["first"] = False
            ops.append((4, lambda: E.e(f"v_mov_b32 v{V_SA}, v{t}")))
            ops.append((4, lambda: E.e(f"v_mov_b32 v{V_SB}, v{t + 1}")))
        else:
            ops.append((4, lambda: E.e(f"v_add_f32 v{V_SA}, v{V_SA}, v{t}")))
            ops.append((4, lambda: E.e(f"v_add_f32 v{V_SB}, v{V_SB}, v{t + 1}")))
        ops.append((4, lambda: E.e(f"v_cvt_pk_bf16_f32 v{p}, v{t}, v{t + 1}")))

    for i in range(n + 2):
        if i < n:
            F(i)
        if 1 <= i <= n:
            X(i - 1)
        if i >= 2:
            A(i - 2)
    if NOSM:
        return []
    return ops


def mask_ops(sbuf, b):
    ops = []
    for q in range(4):
        for r4 in range(4):
            r = 4 * q + r4
            o = 32 * b + 8 * q + r4
            ops.append((4, lambda o=o, r4=r4: E.e(f"v_cmp_lt_i32 s[{S_MK + 2 * r4}:{S_MK + 2 * r4 + 1}], v{V_THR}, {o}")))
        for r4 in range(4):
            r = 4 * q + r4
            reg = S_(sbuf, b) + r
            ops.append((4, lambda reg=reg, r4=r4: E.e(f"v_cndmask_b32 v{reg}, v{reg}, v{V_NEG}, s[{S_MK + 2 * r4}:{S_MK + 2 * r4 + 1}]")))
    return ops


def run_ops(ops):
    for c, f in ops:
        f()


def schedule(mf, fixed, stream, first_gap, last_gap):
    n = len(mf)
    free = []
    for g in range(n):
        c = sum(x[0] for x in fixed[g]) + 2
        free.append(max(0, BUDGET - c) if first_gap <= g <= last_gap else 0)
    T = sum(x[0] for x in stream)
    F = sum(free)
    scale = T / F if F > 0 else 0
    credit = 0.0
    si = 0
    for g in range(n):
        mf[g]()
        run_ops(fixed[g])
        if first_gap <= g <= last_gap:
            credit += free[g] * scale
            while si < len(stream) and (credit >= stream[si][0] * 0.5 or g == last_gap):
                credit -= stream[si][0]
                stream[si][1]()
                si += 1
    assert si == len(stream)


_rare_sites = []


def check_and_accumulate(par, tag):
    E.e(f"v_add_f32 v{V_SA}, v{V_SA}, v{V_SB}")
    E.e(f"v_cmp_nle_f32 vcc, v{V_SA}, v{V_THRC}")
    E.e("s_nop 3")
    E.e(f"s_cbranch_vccz .Lok_{tag}")
    E.e(f"s_getpc_b64 s[{S_RET}:{S_RET + 1}]")
    E.e(f"s_branch .Lrare{par}")
    E.label(f".Lok_{tag}")
    E.e(f"v_add_f32 v{V_L}, v{V_L}, v{V_SA}")


def b_tail_fixed(fixed, kslot_next, dma):
    def bar():
        if STAMP2:
            E.e("s_waitcnt lgkmcnt(0)")
            E.e("s_memtime s[98:99]")
            E.e("s_waitcnt lgkmcnt(0)")
            E.e(f"v_cmp_eq_u32 vcc, s96, v{V_LANE}")
            E.e("v_mov_b32 v224, s98")
            E.e("s_nop 1")
            E.e("v_cndmask_b32 v222, v222, v224, vcc")
        E.e(f"s_waitcnt vmcnt({2 if PFD else 0}) lgkmcnt(0)")
        E.lds_drain()
        E.e("s_barrier")
        if STAMP2:
            E.e("s_memtime s[98:99]")
            E.e("s_waitcnt lgkmcnt(0)")
            E.e("v_mov_b32 v224, s98")
            E.e("v_cndmask_b32 v223, v223, v224, vcc")
            E.e("s_add_u32 s96, s96, 1")
    fixed[BAR_GAP].append((8, bar))
    ng = 32 - BAR_GAP
    idx = 0
    per = (LK + ng - 1) // ng
    for g in range(BAR_GAP, 32):
        for _ in range(per):
            if idx < LK:
                fixed[g].append((4, lambda i=idx: k_read(i, kslot_next)))
                idx += 1
    nd = 0
    for g in range(BAR_GAP, 32):
        for _ in range(DMA_TAILPG):
            if dma:
                fixed[g].append(dma.pop(0))
    return dma


NDMA_TAIL = DMA_TAILPG * (32 - BAR_GAP)


def phase_a(par, dma_rest, with_mfma=True, tag=""):
    nb = 1 - par
    mf = []
    fixed = [[] for _ in range(32)]
    for i in range(32):
        if with_mfma:
            mf.append(lambda i=i: qk_mfma(i, nb))
            if i + LK < 32:
                fixed[i].append((4, lambda i=i: k_read(i + LK, nb)))
        else:
            mf.append(lambda: None)
    g = 0
    for op in dma_rest:
        fixed[g].append(op)
        g += DMA_STRIDE if op[0] > 4 else 0
        g = min(g, 31)
    g0 = 32 - LV
    for k in range(LV):
        fixed[g0 + k - 1].append((4, lambda k=k: v_read(k, par, 0)))
        fixed[g0 + k - 1].append((4, lambda k=k: v_read(k, par, 1)))
    stream = sm_stream(par, list(range(N1 // 2, 16)), first=(N1 == 0))
    schedule(mf, fixed, stream, 0, 29)
    check_and_accumulate(par, tag)


def phase_b(par, masked, last):
    nb = 1 - par
    mf = [lambda i=i: pv_mfma(i, par) for i in range(32)]
    fixed = [[] for _ in range(32)]
    for i in range(32):
        if i + LV < 32:
            fixed[i].append((4, lambda i=i: v_read(i + LV, par, 0)))
            fixed[i].append((4, lambda i=i: v_read(i + LV, par, 1)))
    stream = []
    dma = []
    if not last:
        if masked:
            stream += mask_ops(nb, 0)
        stream += sm_stream(nb, list(range(0, N1 // 2)), first=True)
        if masked:
            stream += mask_ops(nb, 1)
        dma = dma_ops(nb, par)
        dma = b_tail_fixed(fixed, par, dma)
    schedule(mf, fixed, stream, 1 if not masked else 1, BAR_GAP - 1)
    return dma


def set_thr(off_tiles_from_end):
    E.e(f"s_add_u32 s{S_TMP}, s{S_T0}, s{S_N}")
    E.e(f"s_sub_u32 s{S_TMP}, s{S_TMP}, {off_tiles_from_end}")
    E.e(f"s_lshl_b32 s{S_TMP}, s{S_TMP}, 6")
    E.e(f"v_subrev_u32 v{V_THR}, s{S_TMP}, v{V_QREL}")


def iteration(par, masked, tag, dma_in):
    phase_a(par, dma_in, True, tag)
    return phase_b(par, masked, False)


def tile_max(sbuf, dst, t1):
    base = 32 * sbuf
    E.e(f"v_max3_f32 v{dst}, v{base}, v{base + 1}, v{base + 2}")
    E.e(f"v_max3_f32 v{t1}, v{base + 3}, v{base + 4}, v{base + 5}")
    r = 6
    acc = [dst, t1]
    k = 0
    while r + 1 < 32:
        E.e(f"v_max3_f32 v{acc[k]}, v{acc[k]}, v{base + r}, v{base + r + 1}")
        k ^= 1
        r += 2
    E.e(f"v_max_f32 v{dst}, v{dst}, v{t1}")
    E.e(f"v_mov_b32 v{t1}, v{dst}")
    E.e("s_nop 1")
    E.e(f"v_permlane32_swap_b32 v{dst}, v{t1}")
    E.e(f"v_max_f32 v{dst}, v{dst}, v{t1}")


def flag_addr():
    E.e(f"s_lshl_b32 s{S_TMP}, s{S_PID}, 2")
    E.e(f"s_add_u32 s{S_TMP}, s{S_TMP}, s{S_WAVE}")
    E.e(f"s_and_b32 s{S_SHIFT}, s{S_TMP}, 31")
    E.e(f"s_lshr_b32 s{S_TMP}, s{S_TMP}, 5")
    E.e(f"s_lshl_b32 s{S_TMP}, s{S_TMP}, 2")
    E.e(f"v_mov_b32 v{V_T2}, s{S_TMP}")
    E.e(f"s_lshl_b32 s{S_TMP2}, 1, s{S_SHIFT}")
    E.e(f"v_mov_b32 v{V_T3}, s{S_TMP2}")


def stamp(i, real=False):
    if not STAMP:
        return
    assert not E.ldsq or True
    E.e("s_memrealtime s[98:99]" if real else "s_memtime s[98:99]")
    E.e("s_waitcnt lgkmcnt(0)")
    E.lds_drain_keep()
    E.e(f"s_mov_b32 s{86 + i}, s98")


def gen():
    E.block("setup")
    E.e("s_cmp_ge_u32 s2, 256")
    E.e("s_cbranch_scc1 .Lend")
    stamp(0)
    stamp(1, True)
    if STAMP2:
        E.e("s_mov_b32 s96, 0")
        E.e("v_mov_b32 v222, 0")
        E.e("v_mov_b32 v223, 0")
    E.e("s_load_dwordx4 s[4:7], s[0:1], 0")
    E.e("s_load_dwordx4 s[8:11], s[0:1], 16")
    E.e("s_load_dwordx4 s[12:15], s[0:1], 32")
    E.e(f"v_lshrrev_b32 v{V_T0}, 6, v0")
    E.e(f"v_and_b32 v{V_LANE}, 63, v0")
    E.e("s_nop 0")
    E.e(f"v_readfirstlane_b32 s{S_WAVE}, v{V_T0}")
    E.e("s_and_b32 s64, s2, 7")
    E.e("s_lshr_b32 s65, s2, 3")
    E.e("s_and_b32 s66, s65, 1")
    E.e("s_lshl_b32 s64, s64, 1")
    E.e("s_add_u32 s64, s64, s66")
    E.e("s_lshr_b32 s65, s65, 1")
    E.e("s_and_b32 s67, s65, 1")
    E.e("s_lshl_b32 s85, s65, 16")
    E.e("s_mov_b32 s97, s85")
    E.e("s_lshr_b32 s65, s65, 1")
    E.e(f"s_lshl_b32 s{S_PID}, s64, 3")
    E.e(f"s_add_u32 s{S_PID}, s{S_PID}, s65")
    E.e("s_lshl_b32 s68, s64, 20")
    E.e("s_waitcnt lgkmcnt(0)")
    E.e("s_mov_b32 s70, s6"); E.e("s_mov_b32 s71, s7")
    E.e("s_mov_b32 s72, s8"); E.e("s_mov_b32 s73, s9")
    E.e("s_mov_b32 s74, s10"); E.e("s_mov_b32 s75, s11")
    E.e("s_mov_b32 s76, s12"); E.e("s_mov_b32 s77, s13")
    E.e("s_mov_b32 s78, s14"); E.e("s_mov_b32 s79, s15")
    for (srd, lo, hi) in ((4, 4, 5), (8, 70, 71), (12, 72, 73), (16, 74, 75)):
        E.e(f"s_add_u32 s{srd}, s{lo}, s68")
        E.e(f"s_addc_u32 s{srd + 1}, s{hi}, 0")
        E.e(f"s_and_b32 s{srd + 1}, s{srd + 1}, 0xffff")
        E.e(f"s_mov_b32 s{srd + 2}, 0x100000")
        E.e(f"s_mov_b32 s{srd + 3}, 0x00020000")
    E.e("s_mov_b32 s20, s78"); E.e("s_and_b32 s21, s79, 0xffff")
    E.e("s_mov_b32 s22, 0x10000000"); E.e("s_mov_b32 s23, 0x00020000")
    E.e("s_mov_b32 s24, s76"); E.e("s_and_b32 s25, s77, 0xffff")
    E.e("s_mov_b32 s26, 256"); E.e("s_mov_b32 s27, 0x00020000")
    E.e(f"s_mov_b32 s{S_C}, {f2u(C_SCALE):#x}")
    E.e(f"s_lshl_b32 s{S_WB}, s{S_WAVE}, 13")
    E.e(f"s_mov_b32 s{S_OOB}, 0x40000000")
    E.e("s_lshl_b32 s69, s65, 1")
    E.e("s_sub_u32 s80, 32, s69")
    E.e("s_add_u32 s81, s69, 2")
    E.e("s_sub_u32 s82, 15, s65")
    E.e("s_lshl_b32 s82, s82, 16")
    E.e("s_lshl_b32 s83, s65, 16")
    E.e(f"s_min_u32 s84, s80, {N0}")
    E.e("s_sub_u32 s85, s80, s84")
    E.e("s_cmp_eq_u32 s67, 0")
    E.e("s_cbranch_scc0 .Lwg1")
    E.e(f"s_mov_b32 s{S_QB}, s82")
    E.e(f"s_mov_b32 s{S_T0}, 0")
    E.e(f"s_mov_b32 s{S_N}, s84")
    E.e(f"s_mov_b32 s{S_NSEG}, 1")
    E.e(f"s_cmp_lg_u32 s85, 0")
    E.e(f"s_cselect_b32 s{S_ACT}, 1, 0")
    E.e(f"s_mov_b32 s{S_ENDA}, 1")
    E.e(f"s_mov_b32 s{S_STARTB}, 1")
    E.e(f"s_lshl_b32 s{S_ENDB}, s84, 15")
    E.e("s_branch .Lsegdone")
    E.label(".Lwg1")
    E.e(f"s_cmp_lg_u32 s85, 0")
    E.e(f"s_cselect_b32 s{S_NSEG}, 2, 1")
    E.e(f"s_cbranch_scc0 .Lwg1_single")
    E.e(f"s_mov_b32 s{S_QB}, s82")
    E.e(f"s_mov_b32 s{S_T0}, s84")
    E.e(f"s_mov_b32 s{S_N}, s85")
    E.e(f"s_mov_b32 s{S_ACT}, 2")
    E.e(f"s_mov_b32 s{S_QB2}, s83")
    E.e(f"s_mov_b32 s{S_T02}, 0")
    E.e(f"s_mov_b32 s{S_N2}, s81")
    E.e(f"s_mov_b32 s{S_ACT2}, 0")
    E.e(f"s_lshl_b32 s{S_ENDA}, s80, 15")
    E.e(f"s_mov_b32 s{S_STARTB}, 0")
    E.e(f"s_lshl_b32 s{S_ENDB}, s81, 15")
    E.e("s_branch .Lsegdone")
    E.label(".Lwg1_single")
    E.e(f"s_mov_b32 s{S_QB}, s83")
    E.e(f"s_mov_b32 s{S_T0}, 0")
    E.e(f"s_mov_b32 s{S_N}, s81")
    E.e(f"s_mov_b32 s{S_ACT}, 0")
    E.e(f"s_mov_b32 s{S_ENDA}, 1")
    E.e(f"s_mov_b32 s{S_STARTB}, 1")
    E.e(f"s_lshl_b32 s{S_ENDB}, s81, 15")
    E.label(".Lsegdone")
    L = V_LANE
    E.e(f"v_and_b32 v{V_T0}, 31, v{L}")
    E.e(f"v_lshrrev_b32 v{V_T1}, 5, v{L}")
    E.e(f"s_lshl_b32 s{S_TMP}, s{S_WAVE}, 5")
    E.e(f"v_add_u32 v{V_T2}, s{S_TMP}, v{V_T0}")
    E.e(f"v_lshlrev_b32 v{V_QOFF}, 9, v{V_T2}")
    E.e(f"v_lshl_add_u32 v{V_QOFF}, v{V_T1}, 4, v{V_QOFF}")
    E.e(f"v_and_b32 v{V_T3}, 15, v{L}")
    for j in range(8):
        E.e(f"v_add_u32 v{KA + j}, {2 * j}, v{V_T1}")
        E.e(f"v_xor_b32 v{KA + j}, v{KA + j}, v{V_T3}")
        E.e(f"v_lshlrev_b32 v{KA + j}, 4, v{KA + j}")
        E.e(f"v_lshl_add_u32 v{KA + j}, v{V_T0}, 9, v{KA + j}")
    E.e(f"v_bfe_u32 v{TMP}, v{L}, 2, 2")
    E.e(f"v_and_b32 v{TMP + 1}, 3, v{L}")
    E.e(f"v_bfe_u32 v{TMP + 2}, v{L}, 4, 1")
    E.e(f"v_lshl_add_u32 v{TMP + 3}, v{V_T1}, 2, v{TMP}")
    E.e(f"v_lshlrev_b32 v{TMP + 3}, 9, v{TMP + 3}")
    E.e(f"v_lshl_add_u32 v{TMP + 3}, v{TMP + 2}, 5, v{TMP + 3}")
    E.e(f"v_lshl_add_u32 v{TMP + 3}, v{TMP + 1}, 3, v{TMP + 3}")
    E.e(f"v_add_u32 v{TMP + 3}, 0x10000, v{TMP + 3}")
    for i in range(4):
        E.e(f"v_xor_b32 v{VA + i}, {i}, v{TMP}")
        E.e(f"v_lshl_add_u32 v{VA + i}, v{VA + i}, 6, v{TMP + 3}")
    E.e(f"v_lshl_add_u32 v{TMP + 4}, v{V_T1}, 9, s{S_WB}")
    for j in range(8):
        E.e(f"v_add_u32 v{KD + j}, {2 * j % 16}, v{V_T1}")
        E.e(f"v_xor_b32 v{KD + j}, v{KD + j}, v{V_T0}")
        E.e(f"v_lshl_add_u32 v{KD + j}, v{KD + j}, 4, v{TMP + 4}")
        if j >= 4:
            E.e(f"v_add_u32 v{KD + j}, 0x1000, v{KD + j}")
    for g in range(2):
        for o in range(2):
            d = VD + 2 * g + o
            E.e(f"v_add_u32 v{d}, {2 * o}, v{V_T1}")
            E.e(f"v_lshlrev_b32 v{d}, 2, v{d}")
            E.e(f"v_xor_b32 v{d}, v{d}, v{V_T0}")
            E.e(f"v_lshl_add_u32 v{d}, v{d}, 4, v{TMP + 4}")
            if g:
                E.e(f"v_add_u32 v{d}, 0x1000, v{d}")
    E.e(f"v_mov_b32 v{V_NEG}, {NEGBIG:#x}")
    E.e(f"v_mov_b32 v{V_THRC}, {f2u(THR):#x}")
    E.e(f"s_mul_i32 s{S_TMP}, s{S_WAVE}, 0x9000")
    E.e(f"s_lshl_b32 s{S_TMP2}, s{S_PID}, 18")
    E.e(f"s_add_u32 s{S_TMP}, s{S_TMP}, s{S_TMP2}")
    E.e(f"v_lshl_add_u32 v{V_WSOFF}, v{L}, 4, s{S_TMP}")
    E.e(f"v_and_b32 v{V_PF}, 7, v{L}")
    E.e(f"s_lshl_b32 s{S_TMP}, s65, 12")
    E.e(f"s_lshl_b32 s{S_TMP2}, s{S_WAVE}, 10")
    E.e(f"s_add_u32 s{S_TMP}, s{S_TMP}, s{S_TMP2}")
    E.e(f"v_lshl_add_u32 v{V_PF}, v{V_PF}, 7, s{S_TMP}")
    E.e(f"s_lshl_b32 s{S_KN}, s{S_T0}, 15")
    E.e(f"s_mov_b32 s{S_VN}, s{S_KN}")
    E.e(f"s_mov_b32 s{S_FIRST}, 1")
    E.e(f"s_mov_b32 s{S_PUB}, 0")
    for s_ in range(16):
        E.e(f"buffer_load_dwordx4 {ar(A_Q + 4 * s_, 4)}, v{V_QOFF}, s[4:7], s{S_QB} offen offset:{32 * s_}")
    d0 = dma_ops(0, 0, pf=False)
    run_ops(d0[10:])
    run_ops(d0[:10])
    d1 = dma_ops(1, 1, pf=False)[10:]
    run_ops(d1)
    nyoung = 16
    if PFD:
        E.e(f"s_mul_i32 s{S_PFK}, s67, {N0 * 32768}")
        E.e(f"s_add_u32 s{S_PFK}, s{S_PFK}, 0x8000")
        for _ in range(PFD):
            run_ops(pf_ops())
        nyoung += 2 * PFD
    if BULK:
        E.e(f"s_lshl_b32 s{S_TMP}, s{S_WAVE}, 14")
        E.e(f"s_add_u32 s{S_TMP}, s{S_TMP}, s97")
        E.e(f"v_lshl_add_u32 v{V_T0}, v{L}, 7, s{S_TMP}")
        E.e(f"v_add_u32 v{V_T1}, 0x2000, v{V_T0}")
        for srd in (8, 12):
            E.e(f"buffer_load_dword v{V_PFD}, v{V_T0}, s[{srd}:{srd + 3}], 0 offen")
            E.e(f"buffer_load_dword v{V_PFD + 1}, v{V_T1}, s[{srd}:{srd + 3}], 0 offen")
        nyoung += 4
    E.e(f"s_waitcnt vmcnt({nyoung})")
    E.e("s_barrier")

    E.block("prologue")
    E.label(".Lseg")
    E.e(f"s_lshr_b32 s{S_TMP}, s{S_QB}, 9")
    E.e(f"v_lshrrev_b32 v{V_T0}, 9, v{V_QOFF}")
    E.e(f"v_add_u32 v{V_QREL}, s{S_TMP}, v{V_T0}")
    E.e(f"v_lshrrev_b32 v{V_T1}, 5, v{V_LANE}")
    E.e(f"v_lshlrev_b32 v{V_T1}, 2, v{V_T1}")
    E.e(f"v_sub_u32 v{V_QREL}, v{V_QREL}, v{V_T1}")
    for i in range(128):
        E.e(f"v_accvgpr_write_b32 a{A_O + i}, 0")
    E.e(f"v_mov_b32 v{V_L}, 0")
    stamp(2)
    for i in range(LK):
        k_read(i, 0)
    for i in range(32):
        qk_mfma(i, 0)
        if i + LK < 32:
            k_read(i + LK, 0)
    E.e(f"s_lshl_b32 s{S_TMP}, s{S_T0}, 6")
    E.e(f"v_subrev_u32 v{V_THR}, s{S_TMP}, v{V_QREL}")
    E.e("s_nop 7")
    E.e("s_nop 3")
    run_ops(mask_ops(0, 0))
    run_ops(mask_ops(0, 1))
    tile_max(0, V_M, V_T0)
    E.e(f"v_mul_f32 v{V_NMC}, s{S_C}, v{V_M}")
    E.e(f"v_sub_f32 v{V_NMC}, 0, v{V_NMC}")
    run_ops(sm_stream(0, list(range(0, N1 // 2)), first=True))
    E.e(f"s_cmp_eq_u32 s{S_FIRST}, 1")
    E.e("s_cbranch_scc1 .Lpro1")
    E.e("s_waitcnt vmcnt(0)")
    E.e(f"s_cmp_eq_u32 s{S_PUB}, 1")
    E.e("s_cbranch_scc0 .Lpro1")
    flag_addr()
    E.e("s_mov_b64 exec, 1")
    E.e(f"buffer_atomic_or v{V_T3}, v{V_T2}, s[24:27], 0 offen sc1")
    E.e("s_mov_b64 exec, -1")
    E.label(".Lpro1")
    E.e(f"s_waitcnt vmcnt({2 * PFD + 4 * BULK}) lgkmcnt(0)")
    E.lds_drain()
    E.e("s_barrier")
    stamp(3)
    E.e(f"s_cmp_eq_u32 s{S_NSEG}, 2")
    E.e("s_cbranch_scc0 .Lpro2")
    for s_ in range(16):
        E.e(f"buffer_load_dwordx4 {ar(A_Q2 + 4 * s_, 4)}, v{V_QOFF}, s[4:7], s{S_QB2} offen offset:{32 * s_}")
    E.label(".Lpro2")
    for i in range(LK):
        k_read(i, 1)
    dma = dma_ops(0, 1)
    run_ops(dma[:NDMA_TAIL])
    dma_rest_even = dma[NDMA_TAIL:]
    entry_q = list(E.ldsq)
    E.e(f"s_cmp_eq_u32 s{S_N}, 2")
    E.e("s_cbranch_scc1 .Lt0m")
    E.e(f"s_sub_u32 s{S_CNT}, s{S_N}, 2")
    E.e(f"s_lshr_b32 s{S_CNT}, s{S_CNT}, 1")

    E.block("iter0")
    E.label(".Lloop")
    r = iteration(0, False, "i0", dma_ops(0, 1)[NDMA_TAIL:])
    assert list(E.ldsq) == entry_q
    E.e(f"s_sub_u32 s{S_CNT}, s{S_CNT}, 1")
    E.e(f"s_cmp_eq_u32 s{S_CNT}, 0")
    E.e("s_cbranch_scc1 .Lt1m_pre")
    E.block("iter1")
    iteration(1, False, "i1", dma_ops(1, 0)[NDMA_TAIL:])
    assert list(E.ldsq) == entry_q
    E.e("s_branch .Lloop")
    E.block("iter1m")
    E.label(".Lt1m_pre")
    set_thr(2)
    iteration(1, True, "i1m", dma_ops(1, 0)[NDMA_TAIL:])
    assert list(E.ldsq) == entry_q
    E.block("iter0m")
    E.label(".Lt0m")
    set_thr(1)
    iteration(0, True, "i0m", dma_ops(0, 1)[NDMA_TAIL:])
    assert list(E.ldsq) == entry_q
    E.block("final1")
    E.e("s_waitcnt lgkmcnt(0)")
    E.lds_drain()
    phase_a(1, dma_ops(1, 0)[NDMA_TAIL:], with_mfma=False, tag="f1")
    phase_b(1, False, True)
    E.e("s_waitcnt lgkmcnt(0)")
    E.lds_drain()

    E.block("epilogue")
    stamp(4)
    E.e(f"v_mov_b32 v{V_T0}, v{V_L}")
    E.e("s_nop 1")
    E.e(f"v_permlane32_swap_b32 v{V_L}, v{V_T0}")
    E.e(f"v_add_f32 v{V_L}, v{V_L}, v{V_T0}")
    E.e(f"s_cmp_eq_u32 s{S_ACT}, 1")
    E.e("s_cbranch_scc1 .Lcombine")
    E.e(f"s_cmp_eq_u32 s{S_ACT}, 2")
    E.e("s_cbranch_scc1 .Lpublish")
    E.label(".Lstore")
    E.e(f"v_rcp_f32 v{V_ALPHA}, v{V_L}")
    E.e("s_nop 7")
    E.e("s_nop 3")
    for j in range(8):
        x = EP + 32 * (j % 2)
        for r_ in range(16):
            E.e(f"v_accvgpr_read_b32 v{x + r_}, a{A_O + 16 * j + r_}")
        for r_ in range(16):
            E.e(f"v_mul_f32 v{x + r_}, v{x + r_}, v{V_ALPHA}")
        for k in range(8):
            E.e(f"v_cvt_pk_bf16_f32 v{x + 16 + k}, v{x + 2 * k}, v{x + 2 * k + 1}")
        E.e("s_nop 1")
        for gp in range(2):
            y = x + 16 + 4 * gp
            E.e(f"v_permlane32_swap_b32 v{y}, v{y + 2}")
            E.e(f"v_permlane32_swap_b32 v{y + 1}, v{y + 3}")
        for gp in range(2):
            y = x + 16 + 4 * gp
            E.e(f"buffer_store_dwordx4 {vr(y, 4)}, v{V_QOFF}, s[16:19], s{S_QB} offen offset:{64 * j + 32 * gp}")
    stamp(5)
    E.e(f"s_cmp_eq_u32 s{S_NSEG}, 2")
    E.e("s_cbranch_scc0 .Lfin")
    if STAMP:
        for i in range(4):
            E.e(f"s_mov_b32 s{86 + 6 + i}, s{86 + 2 + i}")
    E.label(".Lswitch")
    E.e(f"s_mov_b32 s{S_FIRST}, 0")
    E.e(f"s_mov_b32 s{S_NSEG}, 1")
    E.e(f"s_mov_b32 s{S_QB}, s{S_QB2}")
    E.e(f"s_mov_b32 s{S_T0}, s{S_T02}")
    E.e(f"s_mov_b32 s{S_N}, s{S_N2}")
    E.e(f"s_mov_b32 s{S_ACT}, s{S_ACT2}")
    for i in range(64):
        E.e(f"v_accvgpr_mov_b32 a{A_Q + i}, a{A_Q2 + i}")
    E.e("s_branch .Lseg")

    E.block("combine")
    E.label(".Lpublish")
    E.e("s_nop 7")
    E.e(f"s_mov_b32 s{S_SOFF}, 0")
    for k in range(32):
        E.e(f"buffer_store_dwordx4 {ar(A_O + 4 * k, 4)}, v{V_WSOFF}, s[20:23], s{S_SOFF} offen offset:{1024 * (k % 4)} sc1")
        if k % 4 == 3:
            E.e(f"s_add_u32 s{S_SOFF}, s{S_SOFF}, 0x1000")
    E.e(f"buffer_store_dword v{V_L}, v{V_WSOFF}, s[20:23], s{S_SOFF} offen sc1")
    E.e(f"buffer_store_dword v{V_M}, v{V_WSOFF}, s[20:23], s{S_SOFF} offen offset:4 sc1")
    E.e(f"s_mov_b32 s{S_PUB}, 1")
    if STAMP:
        stamp(5)
        for i in range(4):
            E.e(f"s_mov_b32 s{86 + 6 + i}, s{86 + 2 + i}")
    E.e("s_branch .Lswitch")
    E.label(".Lcombine")
    flag_addr()
    E.label(".Lpoll")
    E.e(f"buffer_load_dword v{V_T3}, v{V_T2}, s[24:27], 0 offen sc0 sc1")
    E.e("s_waitcnt vmcnt(0)")
    E.e(f"v_readfirstlane_b32 s{S_TMP3}, v{V_T3}")
    E.e("s_nop 3")
    E.e(f"s_lshr_b32 s{S_TMP3}, s{S_TMP3}, s{S_SHIFT}")
    E.e(f"s_and_b32 s{S_TMP3}, s{S_TMP3}, 1")
    E.e(f"s_cmp_lg_u32 s{S_TMP3}, 0")
    E.e("s_cbranch_scc1 .Lready")
    E.e("s_sleep 8")
    E.e("s_branch .Lpoll")
    E.label(".Lready")
    E.e(f"s_mov_b32 s{S_SOFF}, 0x8000")
    E.e(f"buffer_load_dword v{V_T0}, v{V_WSOFF}, s[20:23], s{S_SOFF} offen sc1")
    E.e(f"buffer_load_dword v{V_T1}, v{V_WSOFF}, s[20:23], s{S_SOFF} offen offset:4 sc1")
    E.e(f"s_mov_b32 s{S_SOFF}, 0")
    for k in range(32):
        E.e(f"buffer_load_dwordx4 {vr(4 * k, 4)}, v{V_WSOFF}, s[20:23], s{S_SOFF} offen offset:{1024 * (k % 4)} sc1")
        if k % 4 == 3:
            E.e(f"s_add_u32 s{S_SOFF}, s{S_SOFF}, 0x1000")
    E.e("s_waitcnt vmcnt(32)")
    E.e(f"v_max_f32 v{V_T2}, v{V_M}, v{V_T1}")
    E.e(f"v_sub_f32 v{V_T3}, v{V_M}, v{V_T2}")
    E.e(f"v_sub_f32 v{V_T1}, v{V_T1}, v{V_T2}")
    E.e(f"v_mul_f32 v{V_T3}, s{S_C}, v{V_T3}")
    E.e(f"v_mul_f32 v{V_T1}, s{S_C}, v{V_T1}")
    E.e(f"v_exp_f32 v{V_T3}, v{V_T3}")
    E.e(f"v_exp_f32 v{V_T1}, v{V_T1}")
    E.e("s_nop 0")
    E.e(f"v_mul_f32 v{V_L}, v{V_L}, v{V_T3}")
    E.e(f"v_fma_f32 v{V_L}, v{V_T0}, v{V_T1}, v{V_L}")
    for k in range(32):
        E.e(f"s_waitcnt vmcnt({31 - k})")
        for r_ in range(4):
            i = 4 * k + r_
            E.e(f"v_accvgpr_read_b32 v{TMP + r_}, a{A_O + i}")
            E.e(f"v_mul_f32 v{TMP + r_}, v{TMP + r_}, v{V_T3}")
            E.e(f"v_fma_f32 v{TMP + r_}, v{i}, v{V_T1}, v{TMP + r_}")
            E.e(f"v_accvgpr_write_b32 a{A_O + i}, v{TMP + r_}")
    E.e(f"s_mov_b32 s{S_NSEG}, 1")
    E.e("s_branch .Lstore")

    for par in range(2):
        E.block(f"rare{par}")
        E.label(f".Lrare{par}")
        tile_max(par, V_T0, V_T1)
        E.e(f"v_max_f32 v{V_T0}, v{V_T0}, v{V_M}")
        E.e(f"v_sub_f32 v{V_T1}, v{V_M}, v{V_T0}")
        E.e(f"v_mul_f32 v{V_T1}, s{S_C}, v{V_T1}")
        E.e(f"v_exp_f32 v{V_ALPHA}, v{V_T1}")
        E.e(f"v_mov_b32 v{V_M}, v{V_T0}")
        E.e(f"v_mul_f32 v{V_NMC}, s{S_C}, v{V_M}")
        E.e(f"v_sub_f32 v{V_NMC}, 0, v{V_NMC}")
        E.e(f"v_mul_f32 v{V_L}, v{V_L}, v{V_ALPHA}")
        for i in range(0, 128, 4):
            for r_ in range(4):
                E.e(f"v_accvgpr_read_b32 v{TMP + 8 + r_}, a{A_O + i + r_}")
            for r_ in range(4):
                E.e(f"v_mul_f32 v{TMP + 8 + r_}, v{TMP + 8 + r_}, v{V_ALPHA}")
            for r_ in range(4):
                E.e(f"v_accvgpr_write_b32 a{A_O + i + r_}, v{TMP + 8 + r_}")
        run_ops(sm_stream(par, list(range(16)), first=True))
        E.e(f"v_add_f32 v{V_SA}, v{V_SA}, v{V_SB}")
        E.e(f"s_add_u32 s{S_RET}, s{S_RET}, 4")
        E.e(f"s_addc_u32 s{S_RET + 1}, s{S_RET + 1}, 0")
        E.e("s_nop 1")
        E.e(f"s_setpc_b64 s[{S_RET}:{S_RET + 1}]")

    E.block("end")
    E.label(".Lfin")
    if STAMP:
        E.e("s_waitcnt vmcnt(0)")
        stamp(10)
        stamp(11, True)
        E.e("s_lshl_b32 s64, s2, 2")
        E.e(f"s_add_u32 s64, s64, s{S_WAVE}")
        E.e("s_lshl_b32 s64, s64, 6")
        E.e("s_add_u32 s64, s64, 0x8000000")
        E.e("v_mov_b32 v1, s64")
        E.e("s_mov_b64 exec, 1")
        for i in range(12):
            E.e(f"v_mov_b32 v2, s{86 + i}")
            E.e(f"buffer_store_dword v2, v1, s[20:23], 0 offen offset:{4 * i}")
            E.e("s_nop 1")
        E.e("s_waitcnt vmcnt(0)")
        if STAMP2:
            E.e("s_mov_b64 exec, -1")
            E.e("s_lshl_b32 s64, s2, 2")
            E.e(f"s_add_u32 s64, s64, s{S_WAVE}")
            E.e("s_lshl_b32 s64, s64, 9")
            E.e("s_add_u32 s64, s64, 0x9000000")
            E.e(f"v_lshl_add_u32 v1, v{V_LANE}, 2, s64")
            E.e("buffer_store_dword v222, v1, s[20:23], 0 offen")
            E.e("buffer_store_dword v223, v1, s[20:23], 0 offen offset:256")
            E.e("s_waitcnt vmcnt(0)")
    E.label(".Lend")
    E.e("s_endpgm")


HEADER = """; Causal flash-attention forward, B=1 H=16 S=2048 D=256 bf16 (generated by work/gen.py)
; @launch grid=(256,1,1) block=(256,1,1) lds=131072
.amdgcn_target "amdgcn-amd-amdhsa--gfx950"
.text
.globl standalone__softmax_full_causal__prompt_kernel
.p2align 8
.type standalone__softmax_full_causal__prompt_kernel,@function
standalone__softmax_full_causal__prompt_kernel:
"""
FOOTER = """.section .rodata,"a"
.p2align 6
.amdhsa_kernel standalone__softmax_full_causal__prompt_kernel
  .amdhsa_next_free_vgpr 512
  .amdhsa_next_free_sgpr 102
  .amdhsa_accum_offset 256
  .amdhsa_group_segment_fixed_size 0
  .amdhsa_kernarg_size 48
  .amdhsa_user_sgpr_count 2
  .amdhsa_user_sgpr_kernarg_segment_ptr 1
  .amdhsa_system_sgpr_workgroup_id_x 1
.end_amdhsa_kernel
"""

if __name__ == "__main__":
    gen()
    for name in E.order:
        b = E.blocks[name]
        nb = []
        for l in b:
            if nb and l.endswith(" lds") and " m0," in nb[-1]:
                nb.append("s_nop 0")
            nb.append(l)
        E.blocks[name] = nb
    out = HEADER
    for name in E.order:
        out += f"; ---- {name}\n"
        for l in E.blocks[name]:
            out += ("" if l.endswith(":") else "    ") + l + "\n"
    out += FOOTER
    open(sys.argv[1], "w").write(out)
    import pickle
    pickle.dump((E.order, E.blocks), open("blocks.pkl", "wb"))
    n = sum(len(b) for b in E.blocks.values())
    print("instructions:", n, {k: len(v) for k, v in E.blocks.items()})
```

```python
import struct
import sys
import re

N0 = 18
N1 = 12
LK = 8
LV = 6
BAR_GAP = 28
BUDGET = 24
DMA_COST = 8
STAMP = 0
NODMA = 0
NOSM = 0
NOLDS = 0
FIXPTR = 0
BULK = 0
STAMP2 = 0
STAMPD = 0
DMA_TAILPG = 1
DMA_STRIDE = 2
PFD = 3
for a in sys.argv[2:]:
    k, v = a.split("=")
    globals()[k] = int(v)


def f2u(x):
    return struct.unpack("<I", struct.pack("<f", x))[0]


C_SCALE = 0.0625 * 1.4426950408889634
THR = 65536.0
NEGBIG = 0xF149F2CA

def S_(buf, b):
    return 32 * buf + 16 * b
P0 = 64
KF = 96
VF = 128
KA = 160
VA = 168
KD = 172
VD = 180
TMP = 184
V_L = 200
V_M = 201
V_NMC = 202
V_SA = 203
V_SB = 204
V_QREL = 207
V_THR = 208
V_NEG = 209
V_LANE = 210
V_T0 = 211
V_T1 = 212
V_T2 = 213
V_QOFF = 214
V_WSOFF = 215
V_ALPHA = 216
V_T3 = 217
V_THRC = 218
V_PF = 219
V_PFD = 220
EP = 0

A_O = 0
A_Q = 128
A_Q2 = 192

S_C = 28
S_WB = 29
S_KN = 30
S_VN = 31
S_ENDA = 32
S_STARTB = 33
S_ENDB = 34
S_OOB = 35
S_CNT = 36
S_KEY0 = 37
S_NSEG = 38
S_ACT = 39
S_RET = 40
S_MK = 42
S_QB = 50
S_T0 = 51
S_N = 52
S_QB2 = 53
S_T02 = 54
S_N2 = 55
S_ACT2 = 56
S_TMP = 57
S_TMP2 = 58
S_PID = 59
S_WAVE = 60
S_TMP3 = 61
S_SOFF = 62
S_SHIFT = 63
S_PFK = 66
S_PFV = 67
S_FIRST = 68
S_PUB = 69


class Em:
    def __init__(self):
        self.blocks = {}
        self.order = []
        self.cur = None
        self.ldsq = []

    def block(self, name):
        self.cur = []
        self.blocks[name] = self.cur
        self.order.append(name)

    def e(self, s):
        self.cur.append(s)

    def label(self, l):
        self.cur.append(l + ":")

    def ds(self, text, dst):
        self.e(text)
        self.ldsq.append(set(dst))
        assert len(self.ldsq) <= 15, "too many outstanding LDS ops"

    def need(self, regs):
        regs = set(regs)
        last = -1
        for i, d in enumerate(self.ldsq):
            if d & regs:
                last = i
        if last >= 0:
            n = len(self.ldsq) - 1 - last
            self.e(f"s_waitcnt lgkmcnt({n})")
            self.ldsq = self.ldsq[last + 1:]
            return True
        return False

    def lds_drain(self):
        self.ldsq = []

    def lds_drain_keep(self):
        pass


E = Em()


def vr(a, n):
    return f"v[{a}:{a + n - 1}]"


def ar(a, n):
    return f"a[{a}:{a + n - 1}]"


def kfrag(i):
    return KF + 4 * (i % 8)


def vfrag(i):
    return VF + 4 * (i % 8)


def k_read(i, slot):
    b, s = divmod(i, 16)
    off = slot * 32768 + b * 16384 + (s // 8) * 256
    d = kfrag(i)
    E.ds(f"ds_read_b128 {vr(d, 4)}, v{KA + s % 8} offset:{off}", range(d, d + 4))


def v_read(i, slot, half):
    s, j = divmod(i, 8)
    off = slot * 32768 + s * 8192 + (j // 4) * 256 + half * 4096
    d = vfrag(i) + 2 * half
    E.ds(f"ds_read_b64_tr_b16 {vr(d, 2)}, v{VA + j % 4} offset:{off}", range(d, d + 2))


def qk_mfma(i, sbuf):
    b, s = divmod(i, 16)
    regs = list(range(kfrag(i), kfrag(i) + 4))
    if i % 2 == 0 and i + 1 < 32:
        regs += list(range(kfrag(i + 1), kfrag(i + 1) + 4))
    E.need(regs)
    D = vr(S_(sbuf, b), 16)
    C = D if s > 0 else "0"
    E.e(f"v_mfma_f32_32x32x16_bf16 {D}, {vr(kfrag(i), 4)}, {ar(A_Q + 4 * s, 4)}, {C}")


def pv_mfma(i, pbuf):
    s, j = divmod(i, 8)
    regs = list(range(vfrag(i), vfrag(i) + 4))
    if i % 2 == 0 and i + 1 < 32:
        regs += list(range(vfrag(i + 1), vfrag(i + 1) + 4))
    E.need(regs)
    D = ar(A_O + 16 * j, 16)
    E.e(f"v_mfma_f32_32x32x16_bf16 {D}, {vr(vfrag(i), 4)}, {vr(P0 + 16 * pbuf + 4 * s, 4)}, {D}")


def dma_ops(kslot, vslot, pf=True):
    ops = []

    def m0(val):
        return (4, lambda: E.e(f"s_add_u32 m0, s{S_WB}, {val}"))

    def ld(voff, srd, soff, imm):
        if NODMA and E.cur is not E.blocks.get("setup"):
            return (0, lambda: None)
        return (DMA_COST, lambda: E.e(f"buffer_load_dwordx4 v{voff}, s[{srd}:{srd + 3}], s{soff} offen offset:{imm} lds"))

    for g in range(2):
        ops.append(m0(65536 + vslot * 32768 + 4096 * g))
        for jj in range(4):
            ops.append(ld(VD + 2 * g + (jj % 2), 12, S_VN, 1024 * jj))
    for g in range(2):
        ops.append(m0(kslot * 32768 + 4096 * g))
        for jj in range(4):
            ops.append(ld(KD + 4 * g + jj, 8, S_KN, 1024 * jj))
    ops.append((4, lambda: E.e(f"s_mov_b32 s{S_VN}, s{S_KN}")))
    ops.append(upd(S_KN))
    if pf and PFD:
        ops += pf_ops()
    return ops


def upd(sp):
    def f():
        if FIXPTR:
            return
        E.e(f"s_add_u32 s{sp}, s{sp}, 0x8000")
        E.e(f"s_cmp_eq_u32 s{sp}, s{S_ENDA}")
        E.e(f"s_cselect_b32 s{sp}, s{S_STARTB}, s{sp}")
        E.e(f"s_cmp_eq_u32 s{sp}, s{S_ENDB}")
        E.e(f"s_cselect_b32 s{sp}, s{S_OOB}, s{sp}")
    return (20, f)


def pf_ops():
    return [(DMA_COST, lambda: E.e(f"buffer_load_dword v{V_PFD}, v{V_PF}, s[12:15], s{S_PFK} offen")),
            (DMA_COST, lambda: E.e(f"buffer_load_dword v{V_PFD + 1}, v{V_PF}, s[8:11], s{S_PFK} offen")),
            (4, lambda: E.e(f"s_add_u32 s{S_PFK}, s{S_PFK}, 0x8000"))]


def sm_stream(sbuf, pairs, first):
    ops = []
    n = len(pairs)
    st = {"first": first}

    def T(idx):
        return TMP + 2 * (idx % 4)

    def F(idx):
        k = pairs[idx]
        r = 32 * sbuf + 2 * k
        t = T(idx)
        ops.append((4, lambda: E.e(f"v_fma_f32 v{t}, v{r}, s{S_C}, v{V_NMC}")))
        ops.append((4, lambda: E.e(f"v_fma_f32 v{t + 1}, v{r + 1}, s{S_C}, v{V_NMC}")))

    def X(idx):
        t = T(idx)
        ops.append((8, lambda: E.e(f"v_exp_f32 v{t}, v{t}")))
        ops.append((8, lambda: E.e(f"v_exp_f32 v{t + 1}, v{t + 1}")))

    def A(idx):
        k = pairs[idx]
        t = T(idx)
        p = P0 + 16 * sbuf + k
        if st["first"]:
            st["first"] = False
            ops.append((4, lambda: E.e(f"v_mov_b32 v{V_SA}, v{t}")))
            ops.append((4, lambda: E.e(f"v_mov_b32 v{V_SB}, v{t + 1}")))
        else:
            ops.append((4, lambda: E.e(f"v_add_f32 v{V_SA}, v{V_SA}, v{t}")))
            ops.append((4, lambda: E.e(f"v_add_f32 v{V_SB}, v{V_SB}, v{t + 1}")))
        ops.append((4, lambda: E.e(f"v_cvt_pk_bf16_f32 v{p}, v{t}, v{t + 1}")))

    for i in range(n + 2):
        if i < n:
            F(i)
        if 1 <= i <= n:
            X(i - 1)
        if i >= 2:
            A(i - 2)
    if NOSM:
        return []
    return ops


def mask_ops(sbuf, b):
    ops = []
    for q in range(4):
        for r4 in range(4):
            r = 4 * q + r4
            o = 32 * b + 8 * q + r4
            ops.append((4, lambda o=o, r4=r4: E.e(f"v_cmp_lt_i32 s[{S_MK + 2 * r4}:{S_MK + 2 * r4 + 1}], v{V_THR}, {o}")))
        for r4 in range(4):
            r = 4 * q + r4
            reg = S_(sbuf, b) + r
            ops.append((4, lambda reg=reg, r4=r4: E.e(f"v_cndmask_b32 v{reg}, v{reg}, v{V_NEG}, s[{S_MK + 2 * r4}:{S_MK + 2 * r4 + 1}]")))
    return ops


def run_ops(ops):
    for c, f in ops:
        f()


def schedule(mf, fixed, stream, first_gap, last_gap):
    n = len(mf)
    free = []
    for g in range(n):
        c = sum(x[0] for x in fixed[g]) + 2
        free.append(max(0, BUDGET - c) if first_gap <= g <= last_gap else 0)
    T = sum(x[0] for x in stream)
    F = sum(free)
    scale = T / F if F > 0 else 0
    credit = 0.0
    si = 0
    for g in range(n):
        mf[g]()
        run_ops(fixed[g])
        if first_gap <= g <= last_gap:
            credit += free[g] * scale
            while si < len(stream) and (credit >= stream[si][0] * 0.5 or g == last_gap):
                credit -= stream[si][0]
                stream[si][1]()
                si += 1
    assert si == len(stream)


_rare_sites = []


def check_and_accumulate(par, tag):
    E.e(f"v_add_f32 v{V_SA}, v{V_SA}, v{V_SB}")
    E.e(f"v_cmp_nle_f32 vcc, v{V_SA}, v{V_THRC}")
    E.e("s_nop 3")
    E.e(f"s_cbranch_vccz .Lok_{tag}")
    E.e(f"s_getpc_b64 s[{S_RET}:{S_RET + 1}]")
    E.e(f"s_branch .Lrare{par}")
    E.label(f".Lok_{tag}")
    E.e(f"v_add_f32 v{V_L}, v{V_L}, v{V_SA}")


def b_tail_fixed(fixed, kslot_next, dma):
    def bar():
        if STAMP2:
            E.e("s_waitcnt lgkmcnt(0)")
            E.e("s_memtime s[98:99]")
            E.e("s_waitcnt lgkmcnt(0)")
            E.e(f"v_cmp_eq_u32 vcc, s96, v{V_LANE}")
            E.e("v_mov_b32 v224, s98")
            E.e("s_nop 1")
            E.e("v_cndmask_b32 v222, v222, v224, vcc")
        E.e(f"s_waitcnt vmcnt({2 if PFD else 0}) lgkmcnt(0)")
        E.lds_drain()
        E.e("s_barrier")
        if STAMP2:
            E.e("s_memtime s[98:99]")
            E.e("s_waitcnt lgkmcnt(0)")
            E.e("v_mov_b32 v224, s98")
            E.e("v_cndmask_b32 v223, v223, v224, vcc")
            E.e("s_add_u32 s96, s96, 1")
    fixed[BAR_GAP].append((8, bar))
    ng = 32 - BAR_GAP
    idx = 0
    per = (LK + ng - 1) // ng
    for g in range(BAR_GAP, 32):
        for _ in range(per):
            if idx < LK:
                fixed[g].append((4, lambda i=idx: k_read(i, kslot_next)))
                idx += 1
    nd = 0
    for g in range(BAR_GAP, 32):
        for _ in range(DMA_TAILPG):
            if dma:
                fixed[g].append(dma.pop(0))
    return dma


NDMA_TAIL = DMA_TAILPG * (32 - BAR_GAP)


def phase_a(par, dma_rest, with_mfma=True, tag=""):
    nb = 1 - par
    mf = []
    fixed = [[] for _ in range(32)]
    for i in range(32):
        if with_mfma:
            mf.append(lambda i=i: qk_mfma(i, nb))
            if i + LK < 32:
                fixed[i].append((4, lambda i=i: k_read(i + LK, nb)))
        else:
            mf.append(lambda: None)
    g = 0
    for op in dma_rest:
        fixed[g].append(op)
        g += DMA_STRIDE if op[0] > 4 else 0
        g = min(g, 31)
    g0 = 32 - LV
    for k in range(LV):
        fixed[g0 + k - 1].append((4, lambda k=k: v_read(k, par, 0)))
        fixed[g0 + k - 1].append((4, lambda k=k: v_read(k, par, 1)))
    stream = sm_stream(par, list(range(N1 // 2, 16)), first=(N1 == 0))
    schedule(mf, fixed, stream, 0, 29)
    check_and_accumulate(par, tag)


def phase_b(par, masked, last):
    nb = 1 - par
    mf = [lambda i=i: pv_mfma(i, par) for i in range(32)]
    fixed = [[] for _ in range(32)]
    for i in range(32):
        if i + LV < 32:
            fixed[i].append((4, lambda i=i: v_read(i + LV, par, 0)))
            fixed[i].append((4, lambda i=i: v_read(i + LV, par, 1)))
    stream = []
    dma = []
    if not last:
        if masked:
            stream += mask_ops(nb, 0)
        stream += sm_stream(nb, list(range(0, N1 // 2)), first=True)
        if masked:
            stream += mask_ops(nb, 1)
        dma = dma_ops(nb, par)
        dma = b_tail_fixed(fixed, par, dma)
    schedule(mf, fixed, stream, 1 if not masked else 1, BAR_GAP - 1)
    return dma


def set_thr(off_tiles_from_end):
    E.e(f"s_add_u32 s{S_TMP}, s{S_T0}, s{S_N}")
    E.e(f"s_sub_u32 s{S_TMP}, s{S_TMP}, {off_tiles_from_end}")
    E.e(f"s_lshl_b32 s{S_TMP}, s{S_TMP}, 6")
    E.e(f"v_subrev_u32 v{V_THR}, s{S_TMP}, v{V_QREL}")


def iteration(par, masked, tag, dma_in):
    phase_a(par, dma_in, True, tag)
    return phase_b(par, masked, False)


def tile_max(sbuf, dst, t1):
    base = 32 * sbuf
    E.e(f"v_max3_f32 v{dst}, v{base}, v{base + 1}, v{base + 2}")
    E.e(f"v_max3_f32 v{t1}, v{base + 3}, v{base + 4}, v{base + 5}")
    r = 6
    acc = [dst, t1]
    k = 0
    while r + 1 < 32:
        E.e(f"v_max3_f32 v{acc[k]}, v{acc[k]}, v{base + r}, v{base + r + 1}")
        k ^= 1
        r += 2
    E.e(f"v_max_f32 v{dst}, v{dst}, v{t1}")
    E.e(f"v_mov_b32 v{t1}, v{dst}")
    E.e("s_nop 1")
    E.e(f"v_permlane32_swap_b32 v{dst}, v{t1}")
    E.e(f"v_max_f32 v{dst}, v{dst}, v{t1}")


def flag_addr():
    E.e(f"s_lshl_b32 s{S_TMP}, s{S_PID}, 2")
    E.e(f"s_add_u32 s{S_TMP}, s{S_TMP}, s{S_WAVE}")
    E.e(f"s_and_b32 s{S_SHIFT}, s{S_TMP}, 31")
    E.e(f"s_lshr_b32 s{S_TMP}, s{S_TMP}, 5")
    E.e(f"s_lshl_b32 s{S_TMP}, s{S_TMP}, 2")
    E.e(f"s_add_u32 s{S_TMP}, s{S_TMP}, 64")
    E.e(f"v_mov_b32 v{V_T2}, s{S_TMP}")
    E.e(f"s_lshl_b32 s{S_TMP2}, 1, s{S_SHIFT}")
    E.e(f"v_mov_b32 v{V_T3}, s{S_TMP2}")


def stamp(i, real=False):
    if not STAMP:
        return
    assert not E.ldsq or True
    E.e("s_memrealtime s[98:99]" if real else "s_memtime s[98:99]")
    E.e("s_waitcnt lgkmcnt(0)")
    E.lds_drain_keep()
    E.e(f"s_mov_b32 s{86 + i}, s98")


def gen():
    E.block("setup")
    E.e("s_cmp_ge_u32 s2, 256")
    E.e("s_cbranch_scc1 .Lend")
    stamp(0)
    stamp(1, True)
    if STAMP2:
        E.e("s_mov_b32 s96, 0")
        E.e("v_mov_b32 v222, 0")
        E.e("v_mov_b32 v223, 0")
    E.e("s_load_dwordx4 s[4:7], s[0:1], 0")
    E.e("s_load_dwordx4 s[8:11], s[0:1], 16")
    E.e("s_load_dwordx4 s[12:15], s[0:1], 32")
    E.e(f"v_lshrrev_b32 v{V_T0}, 6, v0")
    E.e(f"v_and_b32 v{V_LANE}, 63, v0")
    E.e("s_nop 0")
    E.e(f"v_readfirstlane_b32 s{S_WAVE}, v{V_T0}")
    E.e("s_and_b32 s64, s2, 7")
    E.e("s_lshr_b32 s65, s2, 3")
    E.e("s_and_b32 s66, s65, 1")
    E.e("s_lshl_b32 s64, s64, 1")
    E.e("s_add_u32 s64, s64, s66")
    E.e("s_lshr_b32 s65, s65, 1")
    E.e("s_and_b32 s67, s65, 1")
    E.e("s_lshl_b32 s85, s65, 16")
    E.e("s_mov_b32 s97, s85")
    E.e("s_lshr_b32 s65, s65, 1")
    E.e(f"s_lshl_b32 s{S_PID}, s64, 3")
    E.e(f"s_add_u32 s{S_PID}, s{S_PID}, s65")
    E.e("s_lshl_b32 s68, s64, 20")
    E.e("s_waitcnt lgkmcnt(0)")
    E.e("s_mov_b32 s70, s6"); E.e("s_mov_b32 s71, s7")
    E.e("s_mov_b32 s72, s8"); E.e("s_mov_b32 s73, s9")
    E.e("s_mov_b32 s74, s10"); E.e("s_mov_b32 s75, s11")
    E.e("s_mov_b32 s76, s12"); E.e("s_mov_b32 s77, s13")
    E.e("s_mov_b32 s78, s14"); E.e("s_mov_b32 s79, s15")
    for (srd, lo, hi) in ((4, 4, 5), (8, 70, 71), (12, 72, 73), (16, 74, 75)):
        E.e(f"s_add_u32 s{srd}, s{lo}, s68")
        E.e(f"s_addc_u32 s{srd + 1}, s{hi}, 0")
        E.e(f"s_and_b32 s{srd + 1}, s{srd + 1}, 0xffff")
        E.e(f"s_mov_b32 s{srd + 2}, 0x100000")
        E.e(f"s_mov_b32 s{srd + 3}, 0x00020000")
    E.e("s_mov_b32 s20, s78"); E.e("s_and_b32 s21, s79, 0xffff")
    E.e("s_mov_b32 s22, 0x10000000"); E.e("s_mov_b32 s23, 0x00020000")
    E.e("s_mov_b32 s24, s76"); E.e("s_and_b32 s25, s77, 0xffff")
    E.e("s_mov_b32 s26, 256"); E.e("s_mov_b32 s27, 0x00020000")
    E.e(f"s_mov_b32 s{S_C}, {f2u(C_SCALE):#x}")
    E.e(f"s_lshl_b32 s{S_WB}, s{S_WAVE}, 13")
    E.e(f"s_mov_b32 s{S_OOB}, 0x40000000")
    E.e("s_lshl_b32 s69, s65, 1")
    E.e("s_sub_u32 s80, 32, s69")
    E.e("s_add_u32 s81, s69, 2")
    E.e("s_sub_u32 s82, 15, s65")
    E.e("s_lshl_b32 s82, s82, 16")
    E.e("s_lshl_b32 s83, s65, 16")
    E.e(f"s_min_u32 s84, s80, {N0}")
    E.e("s_sub_u32 s85, s80, s84")
    E.e("s_cmp_eq_u32 s67, 0")
    E.e("s_cbranch_scc0 .Lwg1")
    E.e(f"s_mov_b32 s{S_QB}, s82")
    E.e(f"s_mov_b32 s{S_T0}, 0")
    E.e(f"s_mov_b32 s{S_N}, s84")
    E.e(f"s_mov_b32 s{S_NSEG}, 1")
    E.e(f"s_cmp_lg_u32 s85, 0")
    E.e(f"s_cselect_b32 s{S_ACT}, 1, 0")
    E.e(f"s_mov_b32 s{S_ENDA}, 1")
    E.e(f"s_mov_b32 s{S_STARTB}, 1")
    E.e(f"s_lshl_b32 s{S_ENDB}, s84, 15")
    E.e("s_branch .Lsegdone")
    E.label(".Lwg1")
    E.e(f"s_cmp_lg_u32 s85, 0")
    E.e(f"s_cselect_b32 s{S_NSEG}, 2, 1")
    E.e(f"s_cbranch_scc0 .Lwg1_single")
    E.e(f"s_mov_b32 s{S_QB}, s82")
    E.e(f"s_mov_b32 s{S_T0}, s84")
    E.e(f"s_mov_b32 s{S_N}, s85")
    E.e(f"s_mov_b32 s{S_ACT}, 2")
    E.e(f"s_mov_b32 s{S_QB2}, s83")
    E.e(f"s_mov_b32 s{S_T02}, 0")
    E.e(f"s_mov_b32 s{S_N2}, s81")
    E.e(f"s_mov_b32 s{S_ACT2}, 0")
    E.e(f"s_lshl_b32 s{S_ENDA}, s80, 15")
    E.e(f"s_mov_b32 s{S_STARTB}, 0")
    E.e(f"s_lshl_b32 s{S_ENDB}, s81, 15")
    E.e("s_branch .Lsegdone")
    E.label(".Lwg1_single")
    E.e(f"s_mov_b32 s{S_QB}, s83")
    E.e(f"s_mov_b32 s{S_T0}, 0")
    E.e(f"s_mov_b32 s{S_N}, s81")
    E.e(f"s_mov_b32 s{S_ACT}, 0")
    E.e(f"s_mov_b32 s{S_ENDA}, 1")
    E.e(f"s_mov_b32 s{S_STARTB}, 1")
    E.e(f"s_lshl_b32 s{S_ENDB}, s81, 15")
    E.label(".Lsegdone")
    L = V_LANE
    E.e(f"v_and_b32 v{V_T0}, 31, v{L}")
    E.e(f"v_lshrrev_b32 v{V_T1}, 5, v{L}")
    E.e(f"s_lshl_b32 s{S_TMP}, s{S_WAVE}, 5")
    E.e(f"v_add_u32 v{V_T2}, s{S_TMP}, v{V_T0}")
    E.e(f"v_lshlrev_b32 v{V_QOFF}, 9, v{V_T2}")
    E.e(f"v_lshl_add_u32 v{V_QOFF}, v{V_T1}, 4, v{V_QOFF}")
    E.e(f"v_and_b32 v{V_T3}, 15, v{L}")
    for j in range(8):
        E.e(f"v_add_u32 v{KA + j}, {2 * j}, v{V_T1}")
        E.e(f"v_xor_b32 v{KA + j}, v{KA + j}, v{V_T3}")
        E.e(f"v_lshlrev_b32 v{KA + j}, 4, v{KA + j}")
        E.e(f"v_lshl_add_u32 v{KA + j}, v{V_T0}, 9, v{KA + j}")
    E.e(f"v_bfe_u32 v{TMP}, v{L}, 2, 2")
    E.e(f"v_and_b32 v{TMP + 1}, 3, v{L}")
    E.e(f"v_bfe_u32 v{TMP + 2}, v{L}, 4, 1")
    E.e(f"v_lshl_add_u32 v{TMP + 3}, v{V_T1}, 2, v{TMP}")
    E.e(f"v_lshlrev_b32 v{TMP + 3}, 9, v{TMP + 3}")
    E.e(f"v_lshl_add_u32 v{TMP + 3}, v{TMP + 2}, 5, v{TMP + 3}")
    E.e(f"v_lshl_add_u32 v{TMP + 3}, v{TMP + 1}, 3, v{TMP + 3}")
    E.e(f"v_add_u32 v{TMP + 3}, 0x10000, v{TMP + 3}")
    for i in range(4):
        E.e(f"v_xor_b32 v{VA + i}, {i}, v{TMP}")
        E.e(f"v_lshl_add_u32 v{VA + i}, v{VA + i}, 6, v{TMP + 3}")
    E.e(f"v_lshl_add_u32 v{TMP + 4}, v{V_T1}, 9, s{S_WB}")
    for j in range(8):
        E.e(f"v_add_u32 v{KD + j}, {2 * j % 16}, v{V_T1}")
        E.e(f"v_xor_b32 v{KD + j}, v{KD + j}, v{V_T0}")
        E.e(f"v_lshl_add_u32 v{KD + j}, v{KD + j}, 4, v{TMP + 4}")
        if j >= 4:
            E.e(f"v_add_u32 v{KD + j}, 0x1000, v{KD + j}")
    for g in range(2):
        for o in range(2):
            d = VD + 2 * g + o
            E.e(f"v_add_u32 v{d}, {2 * o}, v{V_T1}")
            E.e(f"v_lshlrev_b32 v{d}, 2, v{d}")
            E.e(f"v_xor_b32 v{d}, v{d}, v{V_T0}")
            E.e(f"v_lshl_add_u32 v{d}, v{d}, 4, v{TMP + 4}")
            if g:
                E.e(f"v_add_u32 v{d}, 0x1000, v{d}")
    E.e(f"v_mov_b32 v{V_NEG}, {NEGBIG:#x}")
    E.e(f"v_mov_b32 v{V_THRC}, {f2u(THR):#x}")
    E.e(f"s_mul_i32 s{S_TMP}, s{S_WAVE}, 0x9000")
    E.e(f"s_lshl_b32 s{S_TMP2}, s{S_PID}, 18")
    E.e(f"s_add_u32 s{S_TMP}, s{S_TMP}, s{S_TMP2}")
    E.e(f"v_lshl_add_u32 v{V_WSOFF}, v{L}, 4, s{S_TMP}")
    E.e(f"v_and_b32 v{V_PF}, 7, v{L}")
    E.e(f"s_lshl_b32 s{S_TMP}, s65, 12")
    E.e(f"s_lshl_b32 s{S_TMP2}, s{S_WAVE}, 10")
    E.e(f"s_add_u32 s{S_TMP}, s{S_TMP}, s{S_TMP2}")
    E.e(f"v_lshl_add_u32 v{V_PF}, v{V_PF}, 7, s{S_TMP}")
    E.e(f"s_lshl_b32 s{S_KN}, s{S_T0}, 15")
    E.e(f"s_mov_b32 s{S_VN}, s{S_KN}")
    E.e(f"s_mov_b32 s{S_FIRST}, 1")
    E.e(f"s_mov_b32 s{S_PUB}, 0")
    for s_ in range(16):
        E.e(f"buffer_load_dwordx4 {ar(A_Q + 4 * s_, 4)}, v{V_QOFF}, s[4:7], s{S_QB} offen offset:{32 * s_}")
    d0 = dma_ops(0, 0, pf=False)
    run_ops(d0[10:])
    run_ops(d0[:10])
    d1 = dma_ops(1, 1, pf=False)[10:]
    run_ops(d1)
    nyoung = 16
    if PFD:
        E.e(f"s_mul_i32 s{S_PFK}, s67, {N0 * 32768}")
        E.e(f"s_add_u32 s{S_PFK}, s{S_PFK}, 0x8000")
        for _ in range(PFD):
            run_ops(pf_ops())
        nyoung += 2 * PFD
    if BULK:
        E.e(f"s_lshl_b32 s{S_TMP}, s{S_WAVE}, 14")
        E.e(f"s_add_u32 s{S_TMP}, s{S_TMP}, s97")
        E.e(f"v_lshl_add_u32 v{V_T0}, v{L}, 7, s{S_TMP}")
        E.e(f"v_add_u32 v{V_T1}, 0x2000, v{V_T0}")
        for srd in (8, 12):
            E.e(f"buffer_load_dword v{V_PFD}, v{V_T0}, s[{srd}:{srd + 3}], 0 offen")
            E.e(f"buffer_load_dword v{V_PFD + 1}, v{V_T1}, s[{srd}:{srd + 3}], 0 offen")
        nyoung += 4
    E.e(f"s_waitcnt vmcnt({nyoung})")
    E.e("s_barrier")

    E.block("prologue")
    E.label(".Lseg")
    E.e(f"s_lshr_b32 s{S_TMP}, s{S_QB}, 9")
    E.e(f"v_lshrrev_b32 v{V_T0}, 9, v{V_QOFF}")
    E.e(f"v_add_u32 v{V_QREL}, s{S_TMP}, v{V_T0}")
    E.e(f"v_lshrrev_b32 v{V_T1}, 5, v{V_LANE}")
    E.e(f"v_lshlrev_b32 v{V_T1}, 2, v{V_T1}")
    E.e(f"v_sub_u32 v{V_QREL}, v{V_QREL}, v{V_T1}")
    for i in range(128):
        E.e(f"v_accvgpr_write_b32 a{A_O + i}, 0")
    E.e(f"v_mov_b32 v{V_L}, 0")
    stamp(2)
    for i in range(LK):
        k_read(i, 0)
    for i in range(32):
        qk_mfma(i, 0)
        if i + LK < 32:
            k_read(i + LK, 0)
    E.e(f"s_lshl_b32 s{S_TMP}, s{S_T0}, 6")
    E.e(f"v_subrev_u32 v{V_THR}, s{S_TMP}, v{V_QREL}")
    E.e("s_nop 7")
    E.e("s_nop 3")
    run_ops(mask_ops(0, 0))
    run_ops(mask_ops(0, 1))
    tile_max(0, V_M, V_T0)
    E.e(f"v_mul_f32 v{V_NMC}, s{S_C}, v{V_M}")
    E.e(f"v_sub_f32 v{V_NMC}, 0, v{V_NMC}")
    run_ops(sm_stream(0, list(range(0, N1 // 2)), first=True))
    E.e(f"s_cmp_eq_u32 s{S_FIRST}, 1")
    E.e("s_cbranch_scc1 .Lpro1")
    E.e("s_waitcnt vmcnt(0)")
    E.e(f"s_cmp_eq_u32 s{S_PUB}, 1")
    E.e("s_cbranch_scc0 .Lpro1")
    flag_addr()
    E.e("s_mov_b64 exec, 1")
    E.e(f"buffer_atomic_or v{V_T3}, v{V_T2}, s[24:27], 0 offen sc1")
    E.e("s_mov_b64 exec, -1")
    E.label(".Lpro1")
    E.e(f"s_waitcnt vmcnt({2 * PFD + 4 * BULK}) lgkmcnt(0)")
    E.lds_drain()
    E.e("s_barrier")
    stamp(3)
    E.e(f"s_cmp_eq_u32 s{S_NSEG}, 2")
    E.e("s_cbranch_scc0 .Lpro2")
    for s_ in range(16):
        E.e(f"buffer_load_dwordx4 {ar(A_Q2 + 4 * s_, 4)}, v{V_QOFF}, s[4:7], s{S_QB2} offen offset:{32 * s_}")
    E.label(".Lpro2")
    for i in range(LK):
        k_read(i, 1)
    dma = dma_ops(0, 1)
    run_ops(dma[:NDMA_TAIL])
    dma_rest_even = dma[NDMA_TAIL:]
    entry_q = list(E.ldsq)
    E.e(f"s_cmp_eq_u32 s{S_N}, 2")
    E.e("s_cbranch_scc1 .Lt0m")
    E.e(f"s_sub_u32 s{S_CNT}, s{S_N}, 2")
    E.e(f"s_lshr_b32 s{S_CNT}, s{S_CNT}, 1")

    E.block("iter0")
    E.label(".Lloop")
    r = iteration(0, False, "i0", dma_ops(0, 1)[NDMA_TAIL:])
    assert list(E.ldsq) == entry_q
    E.e(f"s_sub_u32 s{S_CNT}, s{S_CNT}, 1")
    E.e(f"s_cmp_eq_u32 s{S_CNT}, 0")
    E.e("s_cbranch_scc1 .Lt1m_pre")
    E.block("iter1")
    iteration(1, False, "i1", dma_ops(1, 0)[NDMA_TAIL:])
    assert list(E.ldsq) == entry_q
    E.e("s_branch .Lloop")
    E.block("iter1m")
    E.label(".Lt1m_pre")
    set_thr(2)
    iteration(1, True, "i1m", dma_ops(1, 0)[NDMA_TAIL:])
    assert list(E.ldsq) == entry_q
    E.block("iter0m")
    E.label(".Lt0m")
    set_thr(1)
    iteration(0, True, "i0m", dma_ops(0, 1)[NDMA_TAIL:])
    assert list(E.ldsq) == entry_q
    E.block("final1")
    E.e("s_waitcnt lgkmcnt(0)")
    E.lds_drain()
    phase_a(1, dma_ops(1, 0)[NDMA_TAIL:], with_mfma=False, tag="f1")
    phase_b(1, False, True)
    E.e("s_waitcnt lgkmcnt(0)")
    E.lds_drain()

    E.block("epilogue")
    stamp(4)
    E.e(f"v_mov_b32 v{V_T0}, v{V_L}")
    E.e("s_nop 1")
    E.e(f"v_permlane32_swap_b32 v{V_L}, v{V_T0}")
    E.e(f"v_add_f32 v{V_L}, v{V_L}, v{V_T0}")
    E.e(f"s_cmp_eq_u32 s{S_ACT}, 1")
    E.e("s_cbranch_scc1 .Lcombine")
    E.e(f"s_cmp_eq_u32 s{S_ACT}, 2")
    E.e("s_cbranch_scc1 .Lpublish")
    E.label(".Lstore")
    E.e(f"v_rcp_f32 v{V_ALPHA}, v{V_L}")
    E.e("s_nop 7")
    E.e("s_nop 3")
    for j in range(8):
        x = EP + 32 * (j % 2)
        for r_ in range(16):
            E.e(f"v_accvgpr_read_b32 v{x + r_}, a{A_O + 16 * j + r_}")
        for r_ in range(16):
            E.e(f"v_mul_f32 v{x + r_}, v{x + r_}, v{V_ALPHA}")
        for k in range(8):
            E.e(f"v_cvt_pk_bf16_f32 v{x + 16 + k}, v{x + 2 * k}, v{x + 2 * k + 1}")
        E.e("s_nop 1")
        for gp in range(2):
            y = x + 16 + 4 * gp
            E.e(f"v_permlane32_swap_b32 v{y}, v{y + 2}")
            E.e(f"v_permlane32_swap_b32 v{y + 1}, v{y + 3}")
        for gp in range(2):
            y = x + 16 + 4 * gp
            E.e(f"buffer_store_dwordx4 {vr(y, 4)}, v{V_QOFF}, s[16:19], s{S_QB} offen offset:{64 * j + 32 * gp}")
    stamp(5)
    E.e(f"s_cmp_eq_u32 s{S_NSEG}, 2")
    E.e("s_cbranch_scc0 .Lfin")
    if STAMP:
        for i in range(4):
            E.e(f"s_mov_b32 s{86 + 6 + i}, s{86 + 2 + i}")
    E.label(".Lswitch")
    E.e(f"s_mov_b32 s{S_FIRST}, 0")
    E.e(f"s_mov_b32 s{S_NSEG}, 1")
    E.e(f"s_mov_b32 s{S_QB}, s{S_QB2}")
    E.e(f"s_mov_b32 s{S_T0}, s{S_T02}")
    E.e(f"s_mov_b32 s{S_N}, s{S_N2}")
    E.e(f"s_mov_b32 s{S_ACT}, s{S_ACT2}")
    for i in range(64):
        E.e(f"v_accvgpr_mov_b32 a{A_Q + i}, a{A_Q2 + i}")
    E.e("s_branch .Lseg")

    E.block("combine")
    E.label(".Lpublish")
    E.e("s_nop 7")
    E.e(f"s_mov_b32 s{S_SOFF}, 0")
    for k in range(32):
        E.e(f"buffer_store_dwordx4 {ar(A_O + 4 * k, 4)}, v{V_WSOFF}, s[20:23], s{S_SOFF} offen offset:{1024 * (k % 4)} sc1")
        if k % 4 == 3:
            E.e(f"s_add_u32 s{S_SOFF}, s{S_SOFF}, 0x1000")
    E.e(f"buffer_store_dword v{V_L}, v{V_WSOFF}, s[20:23], s{S_SOFF} offen sc1")
    E.e(f"buffer_store_dword v{V_M}, v{V_WSOFF}, s[20:23], s{S_SOFF} offen offset:4 sc1")
    E.e(f"s_mov_b32 s{S_PUB}, 1")
    if STAMP:
        stamp(5)
        for i in range(4):
            E.e(f"s_mov_b32 s{86 + 6 + i}, s{86 + 2 + i}")
    E.e("s_branch .Lswitch")
    E.label(".Lcombine")
    flag_addr()
    E.label(".Lpoll")
    E.e(f"buffer_load_dword v{V_T3}, v{V_T2}, s[24:27], 0 offen sc0 sc1")
    E.e("s_waitcnt vmcnt(0)")
    E.e(f"v_readfirstlane_b32 s{S_TMP3}, v{V_T3}")
    E.e("s_nop 3")
    E.e(f"s_lshr_b32 s{S_TMP3}, s{S_TMP3}, s{S_SHIFT}")
    E.e(f"s_and_b32 s{S_TMP3}, s{S_TMP3}, 1")
    E.e(f"s_cmp_lg_u32 s{S_TMP3}, 0")
    E.e("s_cbranch_scc1 .Lready")
    E.e("s_sleep 8")
    E.e("s_branch .Lpoll")
    E.label(".Lready")
    E.e(f"s_mov_b32 s{S_SOFF}, 0x8000")
    E.e(f"buffer_load_dword v{V_T0}, v{V_WSOFF}, s[20:23], s{S_SOFF} offen sc1")
    E.e(f"buffer_load_dword v{V_T1}, v{V_WSOFF}, s[20:23], s{S_SOFF} offen offset:4 sc1")
    E.e(f"s_mov_b32 s{S_SOFF}, 0")
    for k in range(32):
        E.e(f"buffer_load_dwordx4 {vr(4 * k, 4)}, v{V_WSOFF}, s[20:23], s{S_SOFF} offen offset:{1024 * (k % 4)} sc1")
        if k % 4 == 3:
            E.e(f"s_add_u32 s{S_SOFF}, s{S_SOFF}, 0x1000")
    E.e("s_waitcnt vmcnt(32)")
    E.e(f"v_max_f32 v{V_T2}, v{V_M}, v{V_T1}")
    E.e(f"v_sub_f32 v{V_T3}, v{V_M}, v{V_T2}")
    E.e(f"v_sub_f32 v{V_T1}, v{V_T1}, v{V_T2}")
    E.e(f"v_mul_f32 v{V_T3}, s{S_C}, v{V_T3}")
    E.e(f"v_mul_f32 v{V_T1}, s{S_C}, v{V_T1}")
    E.e(f"v_exp_f32 v{V_T3}, v{V_T3}")
    E.e(f"v_exp_f32 v{V_T1}, v{V_T1}")
    E.e("s_nop 0")
    E.e(f"v_mul_f32 v{V_L}, v{V_L}, v{V_T3}")
    E.e(f"v_fma_f32 v{V_L}, v{V_T0}, v{V_T1}, v{V_L}")
    for k in range(32):
        E.e(f"s_waitcnt vmcnt({31 - k})")
        for r_ in range(4):
            i = 4 * k + r_
            E.e(f"v_accvgpr_read_b32 v{TMP + r_}, a{A_O + i}")
            E.e(f"v_mul_f32 v{TMP + r_}, v{TMP + r_}, v{V_T3}")
            E.e(f"v_fma_f32 v{TMP + r_}, v{i}, v{V_T1}, v{TMP + r_}")
            E.e(f"v_accvgpr_write_b32 a{A_O + i}, v{TMP + r_}")
    E.e(f"s_mov_b32 s{S_NSEG}, 1")
    E.e("s_branch .Lstore")

    for par in range(2):
        E.block(f"rare{par}")
        E.label(f".Lrare{par}")
        tile_max(par, V_T0, V_T1)
        E.e(f"v_max_f32 v{V_T0}, v{V_T0}, v{V_M}")
        E.e(f"v_sub_f32 v{V_T1}, v{V_M}, v{V_T0}")
        E.e(f"v_mul_f32 v{V_T1}, s{S_C}, v{V_T1}")
        E.e(f"v_exp_f32 v{V_ALPHA}, v{V_T1}")
        E.e(f"v_mov_b32 v{V_M}, v{V_T0}")
        E.e(f"v_mul_f32 v{V_NMC}, s{S_C}, v{V_M}")
        E.e(f"v_sub_f32 v{V_NMC}, 0, v{V_NMC}")
        E.e(f"v_mul_f32 v{V_L}, v{V_L}, v{V_ALPHA}")
        for i in range(0, 128, 4):
            for r_ in range(4):
                E.e(f"v_accvgpr_read_b32 v{TMP + 8 + r_}, a{A_O + i + r_}")
            for r_ in range(4):
                E.e(f"v_mul_f32 v{TMP + 8 + r_}, v{TMP + 8 + r_}, v{V_ALPHA}")
            for r_ in range(4):
                E.e(f"v_accvgpr_write_b32 a{A_O + i + r_}, v{TMP + 8 + r_}")
        run_ops(sm_stream(par, list(range(16)), first=True))
        E.e(f"v_add_f32 v{V_SA}, v{V_SA}, v{V_SB}")
        E.e(f"s_add_u32 s{S_RET}, s{S_RET}, 4")
        E.e(f"s_addc_u32 s{S_RET + 1}, s{S_RET + 1}, 0")
        E.e("s_nop 1")
        E.e(f"s_setpc_b64 s[{S_RET}:{S_RET + 1}]")

    E.block("end")
    E.label(".Lfin")
    if STAMP:
        E.e("s_waitcnt vmcnt(0)")
        stamp(10)
        stamp(11, True)
        E.e("s_lshl_b32 s64, s2, 2")
        E.e(f"s_add_u32 s64, s64, s{S_WAVE}")
        E.e("s_lshl_b32 s64, s64, 6")
        E.e("s_add_u32 s64, s64, 0x8000000")
        E.e("v_mov_b32 v1, s64")
        E.e("s_mov_b64 exec, 1")
        for i in range(12):
            E.e(f"v_mov_b32 v2, s{86 + i}")
            E.e(f"buffer_store_dword v2, v1, s[20:23], 0 offen offset:{4 * i}")
            E.e("s_nop 1")
        E.e("s_waitcnt vmcnt(0)")
        if STAMPD:
            E.e("s_and_b32 s64, s2, 0xffef")
            E.e(f"s_or_b32 s64, s64, s{S_WAVE}")
            E.e("s_cmp_eq_u32 s64, 0")
            E.e("s_cbranch_scc0 .Lnodbg")
            E.e("s_lshl_b32 s64, s2, 1")
            E.e("v_mov_b32 v1, s64")
            for i, sl in enumerate((2, 3, 4, 5, 10, 6, 7)):
                E.e(f"s_sub_u32 s65, s{86 + sl}, s86")
                E.e("v_mov_b32 v2, s65")
                E.e(f"buffer_store_dword v2, v1, s[24:27], 0 offen offset:{4 * i}")
                E.e("s_nop 1")
            E.e("s_sub_u32 s65, s97, s87")
            E.e("v_mov_b32 v2, s65")
            E.e("buffer_store_dword v2, v1, s[24:27], 0 offen offset:28")
            E.e("s_waitcnt vmcnt(0)")
            E.label(".Lnodbg")
        if STAMP2:
            E.e("s_mov_b64 exec, -1")
            E.e("s_lshl_b32 s64, s2, 2")
            E.e(f"s_add_u32 s64, s64, s{S_WAVE}")
            E.e("s_lshl_b32 s64, s64, 9")
            E.e("s_add_u32 s64, s64, 0x9000000")
            E.e(f"v_lshl_add_u32 v1, v{V_LANE}, 2, s64")
            E.e("buffer_store_dword v222, v1, s[20:23], 0 offen")
            E.e("buffer_store_dword v223, v1, s[20:23], 0 offen offset:256")
            E.e("s_waitcnt vmcnt(0)")
    E.label(".Lend")
    E.e("s_endpgm")


HEADER = """; Causal flash-attention forward, B=1 H=16 S=2048 D=256 bf16 (generated by work/gen.py)
; @launch grid=(256,1,1) block=(256,1,1) lds=131072
.amdgcn_target "amdgcn-amd-amdhsa--gfx950"
.text
.globl standalone__softmax_full_causal__prompt_kernel
.p2align 8
.type standalone__softmax_full_causal__prompt_kernel,@function
standalone__softmax_full_causal__prompt_kernel:
"""
FOOTER = """.section .rodata,"a"
.p2align 6
.amdhsa_kernel standalone__softmax_full_causal__prompt_kernel
  .amdhsa_next_free_vgpr 512
  .amdhsa_next_free_sgpr 102
  .amdhsa_accum_offset 256
  .amdhsa_group_segment_fixed_size 0
  .amdhsa_kernarg_size 48
  .amdhsa_user_sgpr_count 2
  .amdhsa_user_sgpr_kernarg_segment_ptr 1
  .amdhsa_system_sgpr_workgroup_id_x 1
.end_amdhsa_kernel
"""

if __name__ == "__main__":
    gen()
    for name in E.order:
        b = E.blocks[name]
        nb = []
        for l in b:
            if nb and l.endswith(" lds") and " m0," in nb[-1]:
                nb.append("s_nop 0")
            nb.append(l)
        E.blocks[name] = nb
    out = HEADER
    for name in E.order:
        out += f"; ---- {name}\n"
        for l in E.blocks[name]:
            out += ("" if l.endswith(":") else "    ") + l + "\n"
    out += FOOTER
    open(sys.argv[1], "w").write(out)
    import pickle
    pickle.dump((E.order, E.blocks), open("blocks.pkl", "wb"))
    n = sum(len(b) for b in E.blocks.values())
    print("instructions:", n, {k: len(v) for k, v in E.blocks.items()})
```

```python
import struct
import sys
import re

N0 = 18
N1 = 12
LK = 8
LV = 6
BAR_GAP = 28
BUDGET = 24
DMA_COST = 8
STAMP = 0
NODMA = 0
NOSM = 0
NOLDS = 0
FIXPTR = 0
BULK = 0
STAMP2 = 0
STAMPD = 0
DMA_TAILPG = 1
DMA_STRIDE = 2
PFD = 3
for a in sys.argv[2:]:
    k, v = a.split("=")
    globals()[k] = int(v)


def f2u(x):
    return struct.unpack("<I", struct.pack("<f", x))[0]


C_SCALE = 0.0625 * 1.4426950408889634
THR = 65536.0
NEGBIG = 0xF149F2CA

def S_(buf, b):
    return 32 * buf + 16 * b
P0 = 64
KF = 96
VF = 128
KA = 160
VA = 168
KD = 172
VD = 180
TMP = 184
V_L = 200
V_M = 201
V_NMC = 202
V_SA = 203
V_SB = 204
V_QREL = 207
V_THR = 208
V_NEG = 209
V_LANE = 210
V_T0 = 211
V_T1 = 212
V_T2 = 213
V_QOFF = 214
V_WSOFF = 215
V_ALPHA = 216
V_T3 = 217
V_THRC = 218
V_PF = 219
V_PFD = 220
V_OL = 225
V_OM = 226
V_FLAG = 227
V_FOT = 228
EP = 0

A_O = 0
A_Q = 128
A_Q2 = 192

S_C = 28
S_WB = 29
S_KN = 30
S_VN = 31
S_ENDA = 32
S_STARTB = 33
S_ENDB = 34
S_OOB = 35
S_CNT = 36
S_KEY0 = 37
S_NSEG = 38
S_ACT = 39
S_RET = 40
S_MK = 42
S_QB = 50
S_T0 = 51
S_N = 52
S_QB2 = 53
S_T02 = 54
S_N2 = 55
S_ACT2 = 56
S_TMP = 57
S_TMP2 = 58
S_PID = 59
S_WAVE = 60
S_TMP3 = 61
S_SOFF = 62
S_SHIFT = 63
S_PFK = 66
S_PFV = 67
S_FIRST = 68
S_PUB = 69
S_HAVE = 70


class Em:
    def __init__(self):
        self.blocks = {}
        self.order = []
        self.cur = None
        self.ldsq = []

    def block(self, name):
        self.cur = []
        self.blocks[name] = self.cur
        self.order.append(name)

    def e(self, s):
        self.cur.append(s)

    def label(self, l):
        self.cur.append(l + ":")

    def ds(self, text, dst):
        self.e(text)
        self.ldsq.append(set(dst))
        assert len(self.ldsq) <= 15, "too many outstanding LDS ops"

    def need(self, regs):
        regs = set(regs)
        last = -1
        for i, d in enumerate(self.ldsq):
            if d & regs:
                last = i
        if last >= 0:
            n = len(self.ldsq) - 1 - last
            self.e(f"s_waitcnt lgkmcnt({n})")
            self.ldsq = self.ldsq[last + 1:]
            return True
        return False

    def lds_drain(self):
        self.ldsq = []

    def lds_drain_keep(self):
        pass


E = Em()


def vr(a, n):
    return f"v[{a}:{a + n - 1}]"


def ar(a, n):
    return f"a[{a}:{a + n - 1}]"


def kfrag(i):
    return KF + 4 * (i % 8)


def vfrag(i):
    return VF + 4 * (i % 8)


def k_read(i, slot):
    b, s = divmod(i, 16)
    off = slot * 32768 + b * 16384 + (s // 8) * 256
    d = kfrag(i)
    E.ds(f"ds_read_b128 {vr(d, 4)}, v{KA + s % 8} offset:{off}", range(d, d + 4))


def v_read(i, slot, half):
    s, j = divmod(i, 8)
    off = slot * 32768 + s * 8192 + (j // 4) * 256 + half * 4096
    d = vfrag(i) + 2 * half
    E.ds(f"ds_read_b64_tr_b16 {vr(d, 2)}, v{VA + j % 4} offset:{off}", range(d, d + 2))


def qk_mfma(i, sbuf):
    b, s = divmod(i, 16)
    regs = list(range(kfrag(i), kfrag(i) + 4))
    if i % 2 == 0 and i + 1 < 32:
        regs += list(range(kfrag(i + 1), kfrag(i + 1) + 4))
    E.need(regs)
    D = vr(S_(sbuf, b), 16)
    C = D if s > 0 else "0"
    E.e(f"v_mfma_f32_32x32x16_bf16 {D}, {vr(kfrag(i), 4)}, {ar(A_Q + 4 * s, 4)}, {C}")


def pv_mfma(i, pbuf):
    s, j = divmod(i, 8)
    regs = list(range(vfrag(i), vfrag(i) + 4))
    if i % 2 == 0 and i + 1 < 32:
        regs += list(range(vfrag(i + 1), vfrag(i + 1) + 4))
    E.need(regs)
    D = ar(A_O + 16 * j, 16)
    E.e(f"v_mfma_f32_32x32x16_bf16 {D}, {vr(vfrag(i), 4)}, {vr(P0 + 16 * pbuf + 4 * s, 4)}, {D}")


def dma_ops(kslot, vslot, pf=True):
    ops = []

    def m0(val):
        return (4, lambda: E.e(f"s_add_u32 m0, s{S_WB}, {val}"))

    def ld(voff, srd, soff, imm):
        if NODMA and E.cur is not E.blocks.get("setup"):
            return (0, lambda: None)
        return (DMA_COST, lambda: E.e(f"buffer_load_dwordx4 v{voff}, s[{srd}:{srd + 3}], s{soff} offen offset:{imm} lds"))

    for g in range(2):
        ops.append(m0(65536 + vslot * 32768 + 4096 * g))
        for jj in range(4):
            ops.append(ld(VD + 2 * g + (jj % 2), 12, S_VN, 1024 * jj))
    for g in range(2):
        ops.append(m0(kslot * 32768 + 4096 * g))
        for jj in range(4):
            ops.append(ld(KD + 4 * g + jj, 8, S_KN, 1024 * jj))
    ops.append((4, lambda: E.e(f"s_mov_b32 s{S_VN}, s{S_KN}")))
    ops.append(upd(S_KN))
    if pf and PFD:
        ops += pf_ops()
    return ops


def upd(sp):
    def f():
        if FIXPTR:
            return
        E.e(f"s_add_u32 s{sp}, s{sp}, 0x8000")
        E.e(f"s_cmp_eq_u32 s{sp}, s{S_ENDA}")
        E.e(f"s_cselect_b32 s{sp}, s{S_STARTB}, s{sp}")
        E.e(f"s_cmp_eq_u32 s{sp}, s{S_ENDB}")
        E.e(f"s_cselect_b32 s{sp}, s{S_OOB}, s{sp}")
    return (20, f)


def pf_ops():
    return [(DMA_COST, lambda: E.e(f"buffer_load_dword v{V_PFD}, v{V_PF}, s[12:15], s{S_PFK} offen")),
            (DMA_COST, lambda: E.e(f"buffer_load_dword v{V_PFD + 1}, v{V_PF}, s[8:11], s{S_PFK} offen")),
            (4, lambda: E.e(f"s_add_u32 s{S_PFK}, s{S_PFK}, 0x8000"))]


def sm_stream(sbuf, pairs, first):
    ops = []
    n = len(pairs)
    st = {"first": first}

    def T(idx):
        return TMP + 2 * (idx % 4)

    def F(idx):
        k = pairs[idx]
        r = 32 * sbuf + 2 * k
        t = T(idx)
        ops.append((4, lambda: E.e(f"v_fma_f32 v{t}, v{r}, s{S_C}, v{V_NMC}")))
        ops.append((4, lambda: E.e(f"v_fma_f32 v{t + 1}, v{r + 1}, s{S_C}, v{V_NMC}")))

    def X(idx):
        t = T(idx)
        ops.append((8, lambda: E.e(f"v_exp_f32 v{t}, v{t}")))
        ops.append((8, lambda: E.e(f"v_exp_f32 v{t + 1}, v{t + 1}")))

    def A(idx):
        k = pairs[idx]
        t = T(idx)
        p = P0 + 16 * sbuf + k
        if st["first"]:
            st["first"] = False
            ops.append((4, lambda: E.e(f"v_mov_b32 v{V_SA}, v{t}")))
            ops.append((4, lambda: E.e(f"v_mov_b32 v{V_SB}, v{t + 1}")))
        else:
            ops.append((4, lambda: E.e(f"v_add_f32 v{V_SA}, v{V_SA}, v{t}")))
            ops.append((4, lambda: E.e(f"v_add_f32 v{V_SB}, v{V_SB}, v{t + 1}")))
        ops.append((4, lambda: E.e(f"v_cvt_pk_bf16_f32 v{p}, v{t}, v{t + 1}")))

    for i in range(n + 2):
        if i < n:
            F(i)
        if 1 <= i <= n:
            X(i - 1)
        if i >= 2:
            A(i - 2)
    if NOSM:
        return []
    return ops


def mask_ops(sbuf, b):
    ops = []
    for q in range(4):
        for r4 in range(4):
            r = 4 * q + r4
            o = 32 * b + 8 * q + r4
            ops.append((4, lambda o=o, r4=r4: E.e(f"v_cmp_lt_i32 s[{S_MK + 2 * r4}:{S_MK + 2 * r4 + 1}], v{V_THR}, {o}")))
        for r4 in range(4):
            r = 4 * q + r4
            reg = S_(sbuf, b) + r
            ops.append((4, lambda reg=reg, r4=r4: E.e(f"v_cndmask_b32 v{reg}, v{reg}, v{V_NEG}, s[{S_MK + 2 * r4}:{S_MK + 2 * r4 + 1}]")))
    return ops


def run_ops(ops):
    for c, f in ops:
        f()


def schedule(mf, fixed, stream, first_gap, last_gap):
    n = len(mf)
    free = []
    for g in range(n):
        c = sum(x[0] for x in fixed[g]) + 2
        free.append(max(0, BUDGET - c) if first_gap <= g <= last_gap else 0)
    T = sum(x[0] for x in stream)
    F = sum(free)
    scale = T / F if F > 0 else 0
    credit = 0.0
    si = 0
    for g in range(n):
        mf[g]()
        run_ops(fixed[g])
        if first_gap <= g <= last_gap:
            credit += free[g] * scale
            while si < len(stream) and (credit >= stream[si][0] * 0.5 or g == last_gap):
                credit -= stream[si][0]
                stream[si][1]()
                si += 1
    assert si == len(stream)


_rare_sites = []


def check_and_accumulate(par, tag):
    E.e(f"v_add_f32 v{V_SA}, v{V_SA}, v{V_SB}")
    E.e(f"v_cmp_nle_f32 vcc, v{V_SA}, v{V_THRC}")
    E.e("s_nop 3")
    E.e(f"s_cbranch_vccz .Lok_{tag}")
    E.e(f"s_getpc_b64 s[{S_RET}:{S_RET + 1}]")
    E.e(f"s_branch .Lrare{par}")
    E.label(f".Lok_{tag}")
    E.e(f"v_add_f32 v{V_L}, v{V_L}, v{V_SA}")


def b_tail_fixed(fixed, kslot_next, dma):
    def bar():
        if STAMP2:
            E.e("s_waitcnt lgkmcnt(0)")
            E.e("s_memtime s[98:99]")
            E.e("s_waitcnt lgkmcnt(0)")
            E.e(f"v_cmp_eq_u32 vcc, s96, v{V_LANE}")
            E.e("v_mov_b32 v224, s98")
            E.e("s_nop 1")
            E.e("v_cndmask_b32 v222, v222, v224, vcc")
        E.e(f"s_waitcnt vmcnt({2 if PFD else 0}) lgkmcnt(0)")
        E.lds_drain()
        E.e("s_barrier")
        if STAMP2:
            E.e("s_memtime s[98:99]")
            E.e("s_waitcnt lgkmcnt(0)")
            E.e("v_mov_b32 v224, s98")
            E.e("v_cndmask_b32 v223, v223, v224, vcc")
            E.e("s_add_u32 s96, s96, 1")
    fixed[BAR_GAP].append((8, bar))
    ng = 32 - BAR_GAP
    idx = 0
    per = (LK + ng - 1) // ng
    for g in range(BAR_GAP, 32):
        for _ in range(per):
            if idx < LK:
                fixed[g].append((4, lambda i=idx: k_read(i, kslot_next)))
                idx += 1
    nd = 0
    for g in range(BAR_GAP, 32):
        for _ in range(DMA_TAILPG):
            if dma:
                fixed[g].append(dma.pop(0))
    return dma


NDMA_TAIL = DMA_TAILPG * (32 - BAR_GAP)


def phase_a(par, dma_rest, with_mfma=True, tag=""):
    nb = 1 - par
    mf = []
    fixed = [[] for _ in range(32)]
    for i in range(32):
        if with_mfma:
            mf.append(lambda i=i: qk_mfma(i, nb))
            if i + LK < 32:
                fixed[i].append((4, lambda i=i: k_read(i + LK, nb)))
        else:
            mf.append(lambda: None)
    g = 0
    for op in dma_rest:
        fixed[g].append(op)
        g += DMA_STRIDE if op[0] > 4 else 0
        g = min(g, 31)
    g0 = 32 - LV
    for k in range(LV):
        fixed[g0 + k - 1].append((4, lambda k=k: v_read(k, par, 0)))
        fixed[g0 + k - 1].append((4, lambda k=k: v_read(k, par, 1)))
    stream = sm_stream(par, list(range(N1 // 2, 16)), first=(N1 == 0))
    schedule(mf, fixed, stream, 0, 29)
    check_and_accumulate(par, tag)


def phase_b(par, masked, last):
    nb = 1 - par
    mf = [lambda i=i: pv_mfma(i, par) for i in range(32)]
    fixed = [[] for _ in range(32)]
    for i in range(32):
        if i + LV < 32:
            fixed[i].append((4, lambda i=i: v_read(i + LV, par, 0)))
            fixed[i].append((4, lambda i=i: v_read(i + LV, par, 1)))
    stream = []
    dma = []
    if not last:
        if masked:
            stream += mask_ops(nb, 0)
        stream += sm_stream(nb, list(range(0, N1 // 2)), first=True)
        if masked:
            stream += mask_ops(nb, 1)
        dma = dma_ops(nb, par)
        dma = b_tail_fixed(fixed, par, dma)
    schedule(mf, fixed, stream, 1 if not masked else 1, BAR_GAP - 1)
    return dma


def set_thr(off_tiles_from_end):
    E.e(f"s_add_u32 s{S_TMP}, s{S_T0}, s{S_N}")
    E.e(f"s_sub_u32 s{S_TMP}, s{S_TMP}, {off_tiles_from_end}")
    E.e(f"s_lshl_b32 s{S_TMP}, s{S_TMP}, 6")
    E.e(f"v_subrev_u32 v{V_THR}, s{S_TMP}, v{V_QREL}")


def iteration(par, masked, tag, dma_in):
    phase_a(par, dma_in, True, tag)
    return phase_b(par, masked, False)


def tile_max(sbuf, dst, t1):
    base = 32 * sbuf
    E.e(f"v_max3_f32 v{dst}, v{base}, v{base + 1}, v{base + 2}")
    E.e(f"v_max3_f32 v{t1}, v{base + 3}, v{base + 4}, v{base + 5}")
    r = 6
    acc = [dst, t1]
    k = 0
    while r + 1 < 32:
        E.e(f"v_max3_f32 v{acc[k]}, v{acc[k]}, v{base + r}, v{base + r + 1}")
        k ^= 1
        r += 2
    E.e(f"v_max_f32 v{dst}, v{dst}, v{t1}")
    E.e(f"v_mov_b32 v{t1}, v{dst}")
    E.e("s_nop 1")
    E.e(f"v_permlane32_swap_b32 v{dst}, v{t1}")
    E.e(f"v_max_f32 v{dst}, v{dst}, v{t1}")


def flag_addr():
    E.e(f"s_lshl_b32 s{S_TMP}, s{S_PID}, 2")
    E.e(f"s_add_u32 s{S_TMP}, s{S_TMP}, s{S_WAVE}")
    E.e(f"s_and_b32 s{S_SHIFT}, s{S_TMP}, 31")
    E.e(f"s_lshr_b32 s{S_TMP}, s{S_TMP}, 5")
    E.e(f"s_lshl_b32 s{S_TMP}, s{S_TMP}, 2")
    E.e(f"s_add_u32 s{S_TMP}, s{S_TMP}, 64")
    E.e(f"v_mov_b32 v{V_T2}, s{S_TMP}")
    E.e(f"s_lshl_b32 s{S_TMP2}, 1, s{S_SHIFT}")
    E.e(f"v_mov_b32 v{V_T3}, s{S_TMP2}")


def flag_test():
    E.e(f"v_readfirstlane_b32 s{S_TMP3}, v{V_FLAG}")
    E.e("s_nop 3")
    E.e(f"s_lshr_b32 s{S_TMP3}, s{S_TMP3}, s{S_SHIFT}")
    E.e(f"s_and_b32 s{S_TMP3}, s{S_TMP3}, 1")
    E.e(f"s_cmp_lg_u32 s{S_TMP3}, 0")


def partner_loads():
    E.e(f"s_mov_b32 s{S_SOFF}, 0")
    for g in range(16):
        E.e(f"buffer_load_dwordx4 {ar(A_Q2 + 4 * g, 4)}, v{V_WSOFF}, s[20:23], s{S_SOFF} offen offset:{1024 * (g % 4)} sc1")
        if g % 4 == 3:
            E.e(f"s_add_u32 s{S_SOFF}, s{S_SOFF}, 0x1000")
    E.e(f"buffer_load_dword v{V_OL}, v{V_WSOFF}, s[20:23], s{S_SOFF} offen sc1")
    E.e(f"buffer_load_dword v{V_OM}, v{V_WSOFF}, s[20:23], s{S_SOFF} offen offset:4 sc1")


def store_epilogue(partner):
    for j in range(8):
        x = EP + 32 * (j % 2)
        for r_ in range(16):
            E.e(f"v_accvgpr_read_b32 v{x + r_}, a{A_O + 16 * j + r_}")
        if partner:
            for k in range(8):
                E.e(f"v_accvgpr_read_b32 v{x + 16 + k}, a{A_Q2 + 8 * j + k}")
        for r_ in range(16):
            E.e(f"v_mul_f32 v{x + r_}, v{x + r_}, v{V_ALPHA}")
        if partner:
            for k in range(8):
                E.e(f"v_lshlrev_b32 v{TMP + k}, 16, v{x + 16 + k}")
                E.e(f"v_and_b32 v{TMP + 8 + k}, 0xffff0000, v{x + 16 + k}")
            for k in range(8):
                E.e(f"v_fma_f32 v{x + 2 * k}, v{TMP + k}, v{V_FOT}, v{x + 2 * k}")
                E.e(f"v_fma_f32 v{x + 2 * k + 1}, v{TMP + 8 + k}, v{V_FOT}, v{x + 2 * k + 1}")
        for k in range(8):
            E.e(f"v_cvt_pk_bf16_f32 v{x + 16 + k}, v{x + 2 * k}, v{x + 2 * k + 1}")
        E.e("s_nop 1")
        for gp in range(2):
            y = x + 16 + 4 * gp
            E.e(f"v_permlane32_swap_b32 v{y}, v{y + 2}")
            E.e(f"v_permlane32_swap_b32 v{y + 1}, v{y + 3}")
        for gp in range(2):
            y = x + 16 + 4 * gp
            E.e(f"buffer_store_dwordx4 {vr(y, 4)}, v{V_QOFF}, s[16:19], s{S_QB} offen offset:{64 * j + 32 * gp}")


def stamp(i, real=False):
    if not STAMP:
        return
    assert not E.ldsq or True
    E.e("s_memrealtime s[98:99]" if real else "s_memtime s[98:99]")
    E.e("s_waitcnt lgkmcnt(0)")
    E.lds_drain_keep()
    E.e(f"s_mov_b32 s{86 + i}, s98")


def gen():
    E.block("setup")
    E.e("s_cmp_ge_u32 s2, 256")
    E.e("s_cbranch_scc1 .Lend")
    stamp(0)
    stamp(1, True)
    if STAMP2:
        E.e("s_mov_b32 s96, 0")
        E.e("v_mov_b32 v222, 0")
        E.e("v_mov_b32 v223, 0")
    E.e("s_load_dwordx4 s[4:7], s[0:1], 0")
    E.e("s_load_dwordx4 s[8:11], s[0:1], 16")
    E.e("s_load_dwordx4 s[12:15], s[0:1], 32")
    E.e(f"v_lshrrev_b32 v{V_T0}, 6, v0")
    E.e(f"v_and_b32 v{V_LANE}, 63, v0")
    E.e("s_nop 0")
    E.e(f"v_readfirstlane_b32 s{S_WAVE}, v{V_T0}")
    E.e("s_and_b32 s64, s2, 7")
    E.e("s_lshr_b32 s65, s2, 3")
    E.e("s_and_b32 s66, s65, 1")
    E.e("s_lshl_b32 s64, s64, 1")
    E.e("s_add_u32 s64, s64, s66")
    E.e("s_lshr_b32 s65, s65, 1")
    E.e("s_and_b32 s67, s65, 1")
    E.e("s_lshl_b32 s85, s65, 16")
    E.e("s_mov_b32 s97, s85")
    E.e("s_lshr_b32 s65, s65, 1")
    E.e(f"s_lshl_b32 s{S_PID}, s64, 3")
    E.e(f"s_add_u32 s{S_PID}, s{S_PID}, s65")
    E.e("s_lshl_b32 s68, s64, 20")
    E.e("s_waitcnt lgkmcnt(0)")
    E.e("s_mov_b32 s70, s6"); E.e("s_mov_b32 s71, s7")
    E.e("s_mov_b32 s72, s8"); E.e("s_mov_b32 s73, s9")
    E.e("s_mov_b32 s74, s10"); E.e("s_mov_b32 s75, s11")
    E.e("s_mov_b32 s76, s12"); E.e("s_mov_b32 s77, s13")
    E.e("s_mov_b32 s78, s14"); E.e("s_mov_b32 s79, s15")
    for (srd, lo, hi) in ((4, 4, 5), (8, 70, 71), (12, 72, 73), (16, 74, 75)):
        E.e(f"s_add_u32 s{srd}, s{lo}, s68")
        E.e(f"s_addc_u32 s{srd + 1}, s{hi}, 0")
        E.e(f"s_and_b32 s{srd + 1}, s{srd + 1}, 0xffff")
        E.e(f"s_mov_b32 s{srd + 2}, 0x100000")
        E.e(f"s_mov_b32 s{srd + 3}, 0x00020000")
    E.e("s_mov_b32 s20, s78"); E.e("s_and_b32 s21, s79, 0xffff")
    E.e("s_mov_b32 s22, 0x10000000"); E.e("s_mov_b32 s23, 0x00020000")
    E.e("s_mov_b32 s24, s76"); E.e("s_and_b32 s25, s77, 0xffff")
    E.e("s_mov_b32 s26, 256"); E.e("s_mov_b32 s27, 0x00020000")
    E.e(f"s_mov_b32 s{S_C}, {f2u(C_SCALE):#x}")
    E.e(f"s_lshl_b32 s{S_WB}, s{S_WAVE}, 13")
    E.e(f"s_mov_b32 s{S_OOB}, 0x40000000")
    E.e("s_lshl_b32 s69, s65, 1")
    E.e("s_sub_u32 s80, 32, s69")
    E.e("s_add_u32 s81, s69, 2")
    E.e("s_sub_u32 s82, 15, s65")
    E.e("s_lshl_b32 s82, s82, 16")
    E.e("s_lshl_b32 s83, s65, 16")
    E.e(f"s_min_u32 s84, s80, {N0}")
    E.e("s_sub_u32 s85, s80, s84")
    E.e("s_cmp_eq_u32 s67, 0")
    E.e("s_cbranch_scc0 .Lwg1")
    E.e(f"s_mov_b32 s{S_QB}, s82")
    E.e(f"s_mov_b32 s{S_T0}, 0")
    E.e(f"s_mov_b32 s{S_N}, s84")
    E.e(f"s_mov_b32 s{S_NSEG}, 1")
    E.e(f"s_cmp_lg_u32 s85, 0")
    E.e(f"s_cselect_b32 s{S_ACT}, 1, 0")
    E.e(f"s_mov_b32 s{S_ENDA}, 1")
    E.e(f"s_mov_b32 s{S_STARTB}, 1")
    E.e(f"s_lshl_b32 s{S_ENDB}, s84, 15")
    E.e("s_branch .Lsegdone")
    E.label(".Lwg1")
    E.e(f"s_cmp_lg_u32 s85, 0")
    E.e(f"s_cselect_b32 s{S_NSEG}, 2, 1")
    E.e(f"s_cbranch_scc0 .Lwg1_single")
    E.e(f"s_mov_b32 s{S_QB}, s82")
    E.e(f"s_mov_b32 s{S_T0}, s84")
    E.e(f"s_mov_b32 s{S_N}, s85")
    E.e(f"s_mov_b32 s{S_ACT}, 2")
    E.e(f"s_mov_b32 s{S_QB2}, s83")
    E.e(f"s_mov_b32 s{S_T02}, 0")
    E.e(f"s_mov_b32 s{S_N2}, s81")
    E.e(f"s_mov_b32 s{S_ACT2}, 0")
    E.e(f"s_lshl_b32 s{S_ENDA}, s80, 15")
    E.e(f"s_mov_b32 s{S_STARTB}, 0")
    E.e(f"s_lshl_b32 s{S_ENDB}, s81, 15")
    E.e("s_branch .Lsegdone")
    E.label(".Lwg1_single")
    E.e(f"s_mov_b32 s{S_QB}, s83")
    E.e(f"s_mov_b32 s{S_T0}, 0")
    E.e(f"s_mov_b32 s{S_N}, s81")
    E.e(f"s_mov_b32 s{S_ACT}, 0")
    E.e(f"s_mov_b32 s{S_ENDA}, 1")
    E.e(f"s_mov_b32 s{S_STARTB}, 1")
    E.e(f"s_lshl_b32 s{S_ENDB}, s81, 15")
    E.label(".Lsegdone")
    L = V_LANE
    E.e(f"v_and_b32 v{V_T0}, 31, v{L}")
    E.e(f"v_lshrrev_b32 v{V_T1}, 5, v{L}")
    E.e(f"s_lshl_b32 s{S_TMP}, s{S_WAVE}, 5")
    E.e(f"v_add_u32 v{V_T2}, s{S_TMP}, v{V_T0}")
    E.e(f"v_lshlrev_b32 v{V_QOFF}, 9, v{V_T2}")
    E.e(f"v_lshl_add_u32 v{V_QOFF}, v{V_T1}, 4, v{V_QOFF}")
    E.e(f"v_and_b32 v{V_T3}, 15, v{L}")
    for j in range(8):
        E.e(f"v_add_u32 v{KA + j}, {2 * j}, v{V_T1}")
        E.e(f"v_xor_b32 v{KA + j}, v{KA + j}, v{V_T3}")
        E.e(f"v_lshlrev_b32 v{KA + j}, 4, v{KA + j}")
        E.e(f"v_lshl_add_u32 v{KA + j}, v{V_T0}, 9, v{KA + j}")
    E.e(f"v_bfe_u32 v{TMP}, v{L}, 2, 2")
    E.e(f"v_and_b32 v{TMP + 1}, 3, v{L}")
    E.e(f"v_bfe_u32 v{TMP + 2}, v{L}, 4, 1")
    E.e(f"v_lshl_add_u32 v{TMP + 3}, v{V_T1}, 2, v{TMP}")
    E.e(f"v_lshlrev_b32 v{TMP + 3}, 9, v{TMP + 3}")
    E.e(f"v_lshl_add_u32 v{TMP + 3}, v{TMP + 2}, 5, v{TMP + 3}")
    E.e(f"v_lshl_add_u32 v{TMP + 3}, v{TMP + 1}, 3, v{TMP + 3}")
    E.e(f"v_add_u32 v{TMP + 3}, 0x10000, v{TMP + 3}")
    for i in range(4):
        E.e(f"v_xor_b32 v{VA + i}, {i}, v{TMP}")
        E.e(f"v_lshl_add_u32 v{VA + i}, v{VA + i}, 6, v{TMP + 3}")
    E.e(f"v_lshl_add_u32 v{TMP + 4}, v{V_T1}, 9, s{S_WB}")
    for j in range(8):
        E.e(f"v_add_u32 v{KD + j}, {2 * j % 16}, v{V_T1}")
        E.e(f"v_xor_b32 v{KD + j}, v{KD + j}, v{V_T0}")
        E.e(f"v_lshl_add_u32 v{KD + j}, v{KD + j}, 4, v{TMP + 4}")
        if j >= 4:
            E.e(f"v_add_u32 v{KD + j}, 0x1000, v{KD + j}")
    for g in range(2):
        for o in range(2):
            d = VD + 2 * g + o
            E.e(f"v_add_u32 v{d}, {2 * o}, v{V_T1}")
            E.e(f"v_lshlrev_b32 v{d}, 2, v{d}")
            E.e(f"v_xor_b32 v{d}, v{d}, v{V_T0}")
            E.e(f"v_lshl_add_u32 v{d}, v{d}, 4, v{TMP + 4}")
            if g:
                E.e(f"v_add_u32 v{d}, 0x1000, v{d}")
    E.e(f"v_mov_b32 v{V_NEG}, {NEGBIG:#x}")
    E.e(f"v_mov_b32 v{V_THRC}, {f2u(THR):#x}")
    E.e(f"s_mul_i32 s{S_TMP}, s{S_WAVE}, 0x9000")
    E.e(f"s_lshl_b32 s{S_TMP2}, s{S_PID}, 18")
    E.e(f"s_add_u32 s{S_TMP}, s{S_TMP}, s{S_TMP2}")
    E.e(f"v_lshl_add_u32 v{V_WSOFF}, v{L}, 4, s{S_TMP}")
    E.e(f"v_and_b32 v{V_PF}, 7, v{L}")
    E.e(f"s_lshl_b32 s{S_TMP}, s65, 12")
    E.e(f"s_lshl_b32 s{S_TMP2}, s{S_WAVE}, 10")
    E.e(f"s_add_u32 s{S_TMP}, s{S_TMP}, s{S_TMP2}")
    E.e(f"v_lshl_add_u32 v{V_PF}, v{V_PF}, 7, s{S_TMP}")
    E.e(f"s_lshl_b32 s{S_KN}, s{S_T0}, 15")
    E.e(f"s_mov_b32 s{S_VN}, s{S_KN}")
    E.e(f"s_mov_b32 s{S_FIRST}, 1")
    E.e(f"s_mov_b32 s{S_PUB}, 0")
    E.e(f"s_mov_b32 s{S_HAVE}, 0")
    for s_ in range(16):
        E.e(f"buffer_load_dwordx4 {ar(A_Q + 4 * s_, 4)}, v{V_QOFF}, s[4:7], s{S_QB} offen offset:{32 * s_}")
    d0 = dma_ops(0, 0, pf=False)
    run_ops(d0[10:])
    run_ops(d0[:10])
    d1 = dma_ops(1, 1, pf=False)[10:]
    run_ops(d1)
    nyoung = 16
    if PFD:
        E.e(f"s_mul_i32 s{S_PFK}, s67, {N0 * 32768}")
        E.e(f"s_add_u32 s{S_PFK}, s{S_PFK}, 0x8000")
        for _ in range(PFD):
            run_ops(pf_ops())
        nyoung += 2 * PFD
    if BULK:
        E.e(f"s_lshl_b32 s{S_TMP}, s{S_WAVE}, 14")
        E.e(f"s_add_u32 s{S_TMP}, s{S_TMP}, s97")
        E.e(f"v_lshl_add_u32 v{V_T0}, v{L}, 7, s{S_TMP}")
        E.e(f"v_add_u32 v{V_T1}, 0x2000, v{V_T0}")
        for srd in (8, 12):
            E.e(f"buffer_load_dword v{V_PFD}, v{V_T0}, s[{srd}:{srd + 3}], 0 offen")
            E.e(f"buffer_load_dword v{V_PFD + 1}, v{V_T1}, s[{srd}:{srd + 3}], 0 offen")
        nyoung += 4
    E.e(f"s_waitcnt vmcnt({nyoung})")
    E.e("s_barrier")

    E.block("prologue")
    E.label(".Lseg")
    E.e(f"s_lshr_b32 s{S_TMP}, s{S_QB}, 9")
    E.e(f"v_lshrrev_b32 v{V_T0}, 9, v{V_QOFF}")
    E.e(f"v_add_u32 v{V_QREL}, s{S_TMP}, v{V_T0}")
    E.e(f"v_lshrrev_b32 v{V_T1}, 5, v{V_LANE}")
    E.e(f"v_lshlrev_b32 v{V_T1}, 2, v{V_T1}")
    E.e(f"v_sub_u32 v{V_QREL}, v{V_QREL}, v{V_T1}")
    for i in range(128):
        E.e(f"v_accvgpr_write_b32 a{A_O + i}, 0")
    E.e(f"v_mov_b32 v{V_L}, 0")
    stamp(2)
    for i in range(LK):
        k_read(i, 0)
    for i in range(32):
        qk_mfma(i, 0)
        if i + LK < 32:
            k_read(i + LK, 0)
    E.e(f"s_lshl_b32 s{S_TMP}, s{S_T0}, 6")
    E.e(f"v_subrev_u32 v{V_THR}, s{S_TMP}, v{V_QREL}")
    E.e("s_nop 7")
    E.e("s_nop 3")
    run_ops(mask_ops(0, 0))
    run_ops(mask_ops(0, 1))
    tile_max(0, V_M, V_T0)
    E.e(f"v_mul_f32 v{V_NMC}, s{S_C}, v{V_M}")
    E.e(f"v_sub_f32 v{V_NMC}, 0, v{V_NMC}")
    run_ops(sm_stream(0, list(range(0, N1 // 2)), first=True))
    E.e(f"s_cmp_eq_u32 s{S_FIRST}, 1")
    E.e("s_cbranch_scc1 .Lpro1")
    E.e("s_waitcnt vmcnt(0)")
    E.e(f"s_cmp_eq_u32 s{S_PUB}, 1")
    E.e("s_cbranch_scc0 .Lpro1")
    flag_addr()
    E.e("s_mov_b64 exec, 1")
    E.e(f"buffer_atomic_or v{V_T3}, v{V_T2}, s[24:27], 0 offen sc1")
    E.e("s_mov_b64 exec, -1")
    E.label(".Lpro1")
    E.e(f"s_waitcnt vmcnt({2 * PFD + 4 * BULK}) lgkmcnt(0)")
    E.lds_drain()
    E.e("s_barrier")
    stamp(3)
    E.e(f"s_cmp_eq_u32 s{S_NSEG}, 2")
    E.e("s_cbranch_scc0 .Lpro2")
    for s_ in range(16):
        E.e(f"buffer_load_dwordx4 {ar(A_Q2 + 4 * s_, 4)}, v{V_QOFF}, s[4:7], s{S_QB2} offen offset:{32 * s_}")
    E.label(".Lpro2")
    for i in range(LK):
        k_read(i, 1)
    dma = dma_ops(0, 1)
    run_ops(dma[:NDMA_TAIL])
    dma_rest_even = dma[NDMA_TAIL:]
    entry_q = list(E.ldsq)
    E.e(f"s_cmp_eq_u32 s{S_N}, 2")
    E.e("s_cbranch_scc1 .Lt0m")
    E.e(f"s_sub_u32 s{S_CNT}, s{S_N}, 2")
    E.e(f"s_lshr_b32 s{S_CNT}, s{S_CNT}, 1")

    E.block("iter0")
    E.label(".Lloop")
    r = iteration(0, False, "i0", dma_ops(0, 1)[NDMA_TAIL:])
    assert list(E.ldsq) == entry_q
    E.e(f"s_sub_u32 s{S_CNT}, s{S_CNT}, 1")
    E.e(f"s_cmp_eq_u32 s{S_CNT}, 0")
    E.e("s_cbranch_scc1 .Lt1m_pre")
    E.block("iter1")
    iteration(1, False, "i1", dma_ops(1, 0)[NDMA_TAIL:])
    assert list(E.ldsq) == entry_q
    E.e("s_branch .Lloop")
    E.block("iter1m")
    E.label(".Lt1m_pre")
    E.e(f"s_cmp_eq_u32 s{S_ACT}, 1")
    E.e("s_cbranch_scc0 .Lt1m_nf")
    flag_addr()
    E.e(f"buffer_load_dword v{V_FLAG}, v{V_T2}, s[24:27], 0 offen sc0 sc1")
    E.label(".Lt1m_nf")
    set_thr(2)
    iteration(1, True, "i1m", dma_ops(1, 0)[NDMA_TAIL:])
    assert list(E.ldsq) == entry_q
    E.block("iter0m")
    E.e(f"s_cmp_eq_u32 s{S_ACT}, 1")
    E.e("s_cbranch_scc0 .Lt0m")
    flag_test()
    E.e("s_cbranch_scc0 .Lt0m")
    partner_loads()
    E.e(f"s_mov_b32 s{S_HAVE}, 1")
    E.label(".Lt0m")
    set_thr(1)
    iteration(0, True, "i0m", dma_ops(0, 1)[NDMA_TAIL:])
    assert list(E.ldsq) == entry_q
    E.block("final1")
    E.e("s_waitcnt lgkmcnt(0)")
    E.lds_drain()
    phase_a(1, dma_ops(1, 0)[NDMA_TAIL:], with_mfma=False, tag="f1")
    phase_b(1, False, True)
    E.e("s_waitcnt lgkmcnt(0)")
    E.lds_drain()

    E.block("epilogue")
    stamp(4)
    E.e(f"v_mov_b32 v{V_T0}, v{V_L}")
    E.e("s_nop 1")
    E.e(f"v_permlane32_swap_b32 v{V_L}, v{V_T0}")
    E.e(f"v_add_f32 v{V_L}, v{V_L}, v{V_T0}")
    E.e(f"s_cmp_eq_u32 s{S_ACT}, 1")
    E.e("s_cbranch_scc1 .Lcombine")
    E.e(f"s_cmp_eq_u32 s{S_ACT}, 2")
    E.e("s_cbranch_scc1 .Lpublish")
    E.label(".Lstore")
    E.e(f"v_rcp_f32 v{V_ALPHA}, v{V_L}")
    E.e("s_nop 7")
    E.e("s_nop 3")
    store_epilogue(False)
    stamp(5)
    E.e(f"s_cmp_eq_u32 s{S_NSEG}, 2")
    E.e("s_cbranch_scc0 .Lfin")
    if STAMP:
        for i in range(4):
            E.e(f"s_mov_b32 s{86 + 6 + i}, s{86 + 2 + i}")
    E.label(".Lswitch")
    E.e(f"s_mov_b32 s{S_FIRST}, 0")
    E.e(f"s_mov_b32 s{S_NSEG}, 1")
    E.e(f"s_mov_b32 s{S_QB}, s{S_QB2}")
    E.e(f"s_mov_b32 s{S_T0}, s{S_T02}")
    E.e(f"s_mov_b32 s{S_N}, s{S_N2}")
    E.e(f"s_mov_b32 s{S_ACT}, s{S_ACT2}")
    for i in range(64):
        E.e(f"v_accvgpr_mov_b32 a{A_Q + i}, a{A_Q2 + i}")
    E.e("s_branch .Lseg")

    E.block("combine")
    E.label(".Lpublish")
    E.e("s_nop 7")
    E.e("s_nop 3")
    E.e(f"s_mov_b32 s{S_SOFF}, 0")
    for j in range(8):
        x = EP + 32 * (j % 2)
        for r_ in range(16):
            E.e(f"v_accvgpr_read_b32 v{x + r_}, a{A_O + 16 * j + r_}")
        for k in range(8):
            E.e(f"v_cvt_pk_bf16_f32 v{x + 16 + k}, v{x + 2 * k}, v{x + 2 * k + 1}")
        for gp in range(2):
            g = 2 * j + gp
            E.e(f"buffer_store_dwordx4 {vr(x + 16 + 4 * gp, 4)}, v{V_WSOFF}, s[20:23], s{S_SOFF} offen offset:{1024 * (g % 4)} sc1")
        if j % 2 == 1:
            E.e(f"s_add_u32 s{S_SOFF}, s{S_SOFF}, 0x1000")
    E.e(f"buffer_store_dword v{V_L}, v{V_WSOFF}, s[20:23], s{S_SOFF} offen sc1")
    E.e(f"buffer_store_dword v{V_M}, v{V_WSOFF}, s[20:23], s{S_SOFF} offen offset:4 sc1")
    E.e(f"s_mov_b32 s{S_PUB}, 1")
    if STAMP:
        stamp(5)
        for i in range(4):
            E.e(f"s_mov_b32 s{86 + 6 + i}, s{86 + 2 + i}")
    E.e("s_branch .Lswitch")
    E.label(".Lcombine")
    E.e(f"s_cmp_eq_u32 s{S_HAVE}, 1")
    E.e("s_cbranch_scc1 .Lready")
    flag_addr()
    E.label(".Lpoll")
    E.e(f"buffer_load_dword v{V_FLAG}, v{V_T2}, s[24:27], 0 offen sc0 sc1")
    E.e("s_waitcnt vmcnt(0)")
    flag_test()
    E.e("s_cbranch_scc1 .Lpolldone")
    E.e("s_sleep 8")
    E.e("s_branch .Lpoll")
    E.label(".Lpolldone")
    partner_loads()
    E.label(".Lready")
    E.e("s_waitcnt vmcnt(0)")
    E.e(f"v_max_f32 v{V_T2}, v{V_M}, v{V_OM}")
    E.e(f"v_sub_f32 v{V_T3}, v{V_M}, v{V_T2}")
    E.e(f"v_sub_f32 v{V_T1}, v{V_OM}, v{V_T2}")
    E.e(f"v_mul_f32 v{V_T3}, s{S_C}, v{V_T3}")
    E.e(f"v_mul_f32 v{V_T1}, s{S_C}, v{V_T1}")
    E.e(f"v_exp_f32 v{V_T3}, v{V_T3}")
    E.e(f"v_exp_f32 v{V_T1}, v{V_T1}")
    E.e("s_nop 0")
    E.e(f"v_mul_f32 v{V_L}, v{V_L}, v{V_T3}")
    E.e(f"v_fma_f32 v{V_L}, v{V_OL}, v{V_T1}, v{V_L}")
    E.e(f"v_rcp_f32 v{V_T0}, v{V_L}")
    E.e("s_nop 0")
    E.e(f"v_mul_f32 v{V_ALPHA}, v{V_T3}, v{V_T0}")
    E.e(f"v_mul_f32 v{V_FOT}, v{V_T1}, v{V_T0}")
    store_epilogue(True)
    stamp(5)
    E.e("s_branch .Lfin")

    for par in range(2):
        E.block(f"rare{par}")
        E.label(f".Lrare{par}")
        tile_max(par, V_T0, V_T1)
        E.e(f"v_max_f32 v{V_T0}, v{V_T0}, v{V_M}")
        E.e(f"v_sub_f32 v{V_T1}, v{V_M}, v{V_T0}")
        E.e(f"v_mul_f32 v{V_T1}, s{S_C}, v{V_T1}")
        E.e(f"v_exp_f32 v{V_ALPHA}, v{V_T1}")
        E.e(f"v_mov_b32 v{V_M}, v{V_T0}")
        E.e(f"v_mul_f32 v{V_NMC}, s{S_C}, v{V_M}")
        E.e(f"v_sub_f32 v{V_NMC}, 0, v{V_NMC}")
        E.e(f"v_mul_f32 v{V_L}, v{V_L}, v{V_ALPHA}")
        for i in range(0, 128, 4):
            for r_ in range(4):
                E.e(f"v_accvgpr_read_b32 v{TMP + 8 + r_}, a{A_O + i + r_}")
            for r_ in range(4):
                E.e(f"v_mul_f32 v{TMP + 8 + r_}, v{TMP + 8 + r_}, v{V_ALPHA}")
            for r_ in range(4):
                E.e(f"v_accvgpr_write_b32 a{A_O + i + r_}, v{TMP + 8 + r_}")
        run_ops(sm_stream(par, list(range(16)), first=True))
        E.e(f"v_add_f32 v{V_SA}, v{V_SA}, v{V_SB}")
        E.e(f"s_add_u32 s{S_RET}, s{S_RET}, 4")
        E.e(f"s_addc_u32 s{S_RET + 1}, s{S_RET + 1}, 0")
        E.e("s_nop 1")
        E.e(f"s_setpc_b64 s[{S_RET}:{S_RET + 1}]")

    E.block("end")
    E.label(".Lfin")
    if STAMP:
        E.e("s_waitcnt vmcnt(0)")
        stamp(10)
        stamp(11, True)
        E.e("s_lshl_b32 s64, s2, 2")
        E.e(f"s_add_u32 s64, s64, s{S_WAVE}")
        E.e("s_lshl_b32 s64, s64, 6")
        E.e("s_add_u32 s64, s64, 0x8000000")
        E.e("v_mov_b32 v1, s64")
        E.e("s_mov_b64 exec, 1")
        for i in range(12):
            E.e(f"v_mov_b32 v2, s{86 + i}")
            E.e(f"buffer_store_dword v2, v1, s[20:23], 0 offen offset:{4 * i}")
            E.e("s_nop 1")
        E.e("s_waitcnt vmcnt(0)")
        if STAMPD:
            E.e("s_and_b32 s64, s2, 0xffef")
            E.e(f"s_or_b32 s64, s64, s{S_WAVE}")
            E.e("s_cmp_eq_u32 s64, 0")
            E.e("s_cbranch_scc0 .Lnodbg")
            E.e("s_lshl_b32 s64, s2, 1")
            E.e("v_mov_b32 v1, s64")
            for i, sl in enumerate((2, 3, 4, 5, 10, 6, 7)):
                E.e(f"s_sub_u32 s65, s{86 + sl}, s86")
                E.e("v_mov_b32 v2, s65")
                E.e(f"buffer_store_dword v2, v1, s[24:27], 0 offen offset:{4 * i}")
                E.e("s_nop 1")
            E.e("s_sub_u32 s65, s97, s87")
            E.e("v_mov_b32 v2, s65")
            E.e("buffer_store_dword v2, v1, s[24:27], 0 offen offset:28")
            E.e("s_waitcnt vmcnt(0)")
            E.label(".Lnodbg")
        if STAMP2:
            E.e("s_mov_b64 exec, -1")
            E.e("s_lshl_b32 s64, s2, 2")
            E.e(f"s_add_u32 s64, s64, s{S_WAVE}")
            E.e("s_lshl_b32 s64, s64, 9")
            E.e("s_add_u32 s64, s64, 0x9000000")
            E.e(f"v_lshl_add_u32 v1, v{V_LANE}, 2, s64")
            E.e("buffer_store_dword v222, v1, s[20:23], 0 offen")
            E.e("buffer_store_dword v223, v1, s[20:23], 0 offen offset:256")
            E.e("s_waitcnt vmcnt(0)")
    E.label(".Lend")
    E.e("s_endpgm")


HEADER = """; Causal flash-attention forward, B=1 H=16 S=2048 D=256 bf16 (generated by work/gen.py)
; @launch grid=(256,1,1) block=(256,1,1) lds=131072
.amdgcn_target "amdgcn-amd-amdhsa--gfx950"
.text
.globl standalone__softmax_full_causal__prompt_kernel
.p2align 8
.type standalone__softmax_full_causal__prompt_kernel,@function
standalone__softmax_full_causal__prompt_kernel:
"""
FOOTER = """.section .rodata,"a"
.p2align 6
.amdhsa_kernel standalone__softmax_full_causal__prompt_kernel
  .amdhsa_next_free_vgpr 512
  .amdhsa_next_free_sgpr 102
  .amdhsa_accum_offset 256
  .amdhsa_group_segment_fixed_size 0
  .amdhsa_kernarg_size 48
  .amdhsa_user_sgpr_count 2
  .amdhsa_user_sgpr_kernarg_segment_ptr 1
  .amdhsa_system_sgpr_workgroup_id_x 1
.end_amdhsa_kernel
"""

if __name__ == "__main__":
    gen()
    for name in E.order:
        b = E.blocks[name]
        nb = []
        for l in b:
            if nb and l.endswith(" lds") and " m0," in nb[-1]:
                nb.append("s_nop 0")
            nb.append(l)
        E.blocks[name] = nb
    out = HEADER
    for name in E.order:
        out += f"; ---- {name}\n"
        for l in E.blocks[name]:
            out += ("" if l.endswith(":") else "    ") + l + "\n"
    out += FOOTER
    open(sys.argv[1], "w").write(out)
    import pickle
    pickle.dump((E.order, E.blocks), open("blocks.pkl", "wb"))
    n = sum(len(b) for b in E.blocks.values())
    print("instructions:", n, {k: len(v) for k, v in E.blocks.items()})
```

```python
import struct
import sys
import re

N0 = 18
N1 = 12
LK = 8
LV = 6
BAR_GAP = 28
BUDGET = 24
DMA_COST = 8
STAMP = 0
NODMA = 0
NOSM = 0
NOLDS = 0
FIXPTR = 0
BULK = 0
STAMP2 = 0
STAMPD = 0
CODEPF = 0
FINE = 0
QLDS = 1
EPLDS = 1
LATE = 0
DMA_TAILPG = 1
DMA_STRIDE = 2
PFD = 3
for a in sys.argv[2:]:
    k, v = a.split("=")
    globals()[k] = int(v)


def f2u(x):
    return struct.unpack("<I", struct.pack("<f", x))[0]


C_SCALE = 0.0625 * 1.4426950408889634
THR = 65536.0
NEGBIG = 0xF149F2CA

def S_(buf, b):
    return 32 * buf + 16 * b
P0 = 64
KF = 96
VF = 128
KA = 160
VA = 168
KD = 172
VD = 180
TMP = 184
V_L = 200
V_M = 201
V_NMC = 202
V_SA = 203
V_SB = 204
V_QREL = 207
V_THR = 208
V_NEG = 209
V_LANE = 210
V_T0 = 211
V_T1 = 212
V_T2 = 213
V_QOFF = 214
V_WSOFF = 215
V_ALPHA = 216
V_T3 = 217
V_THRC = 218
V_PF = 219
V_PFD = 220
V_OL = 225
V_OM = 226
V_FLAG = 227
V_FOT = 228
EP = 0

A_O = 0
A_Q = 128
A_Q2 = 192

S_C = 28
S_WB = 29
S_KN = 30
S_VN = 31
S_ENDA = 32
S_STARTB = 33
S_ENDB = 34
S_OOB = 35
S_CNT = 36
S_KEY0 = 37
S_NSEG = 38
S_ACT = 39
S_RET = 40
S_MK = 42
S_QB = 50
S_T0 = 51
S_N = 52
S_QB2 = 53
S_T02 = 54
S_N2 = 55
S_ACT2 = 56
S_TMP = 57
S_TMP2 = 58
S_PID = 59
S_WAVE = 60
S_TMP3 = 61
S_SOFF = 62
S_SHIFT = 63
S_PFK = 66
S_PFV = 67
S_FIRST = 68
S_PUB = 69
S_HAVE = 70
S_QS = 71


class Em:
    def __init__(self):
        self.blocks = {}
        self.order = []
        self.cur = None
        self.ldsq = []

    def block(self, name):
        self.cur = []
        self.blocks[name] = self.cur
        self.order.append(name)

    def e(self, s):
        self.cur.append(s)

    def label(self, l):
        self.cur.append(l + ":")

    def ds(self, text, dst):
        self.e(text)
        self.ldsq.append(set(dst))
        assert len(self.ldsq) <= 15, "too many outstanding LDS ops"

    def need(self, regs):
        regs = set(regs)
        last = -1
        for i, d in enumerate(self.ldsq):
            if d & regs:
                last = i
        if last >= 0:
            n = len(self.ldsq) - 1 - last
            self.e(f"s_waitcnt lgkmcnt({n})")
            self.ldsq = self.ldsq[last + 1:]
            return True
        return False

    def lds_drain(self):
        self.ldsq = []

    def lds_drain_keep(self):
        pass


E = Em()


def vr(a, n):
    return f"v[{a}:{a + n - 1}]"


def ar(a, n):
    return f"a[{a}:{a + n - 1}]"


def kfrag(i):
    return KF + 4 * (i % 8)


def vfrag(i):
    return VF + 4 * (i % 8)


def k_read(i, slot):
    b, s = divmod(i, 16)
    off = slot * 32768 + b * 16384 + (s // 8) * 256
    d = kfrag(i)
    E.ds(f"ds_read_b128 {vr(d, 4)}, v{KA + s % 8} offset:{off}", range(d, d + 4))


def v_read(i, slot, half):
    s, j = divmod(i, 8)
    off = slot * 32768 + s * 8192 + (j // 4) * 256 + half * 4096
    d = vfrag(i) + 2 * half
    E.ds(f"ds_read_b64_tr_b16 {vr(d, 2)}, v{VA + j % 4} offset:{off}", range(d, d + 2))


def qk_mfma(i, sbuf):
    b, s = divmod(i, 16)
    regs = list(range(kfrag(i), kfrag(i) + 4))
    if i % 2 == 0 and i + 1 < 32:
        regs += list(range(kfrag(i + 1), kfrag(i + 1) + 4))
    E.need(regs)
    D = vr(S_(sbuf, b), 16)
    C = D if s > 0 else "0"
    E.e(f"v_mfma_f32_32x32x16_bf16 {D}, {vr(kfrag(i), 4)}, {ar(A_Q + 4 * s, 4)}, {C}")


def pv_mfma(i, pbuf):
    s, j = divmod(i, 8)
    regs = list(range(vfrag(i), vfrag(i) + 4))
    if i % 2 == 0 and i + 1 < 32:
        regs += list(range(vfrag(i + 1), vfrag(i + 1) + 4))
    E.need(regs)
    D = ar(A_O + 16 * j, 16)
    E.e(f"v_mfma_f32_32x32x16_bf16 {D}, {vr(vfrag(i), 4)}, {vr(P0 + 16 * pbuf + 4 * s, 4)}, {D}")


def dma_ops(kslot, vslot, pf=True):
    ops = []

    def m0(val):
        return (4, lambda: E.e(f"s_add_u32 m0, s{S_WB}, {val}"))

    def ld(voff, srd, soff, imm):
        if NODMA and E.cur is not E.blocks.get("setup"):
            return (0, lambda: None)
        return (DMA_COST, lambda: E.e(f"buffer_load_dwordx4 v{voff}, s[{srd}:{srd + 3}], s{soff} offen offset:{imm} lds"))

    for g in range(2):
        ops.append(m0(65536 + vslot * 32768 + 4096 * g))
        for jj in range(4):
            ops.append(ld(VD + 2 * g + (jj % 2), 12, S_VN, 1024 * jj))
    for g in range(2):
        ops.append(m0(kslot * 32768 + 4096 * g))
        for jj in range(4):
            ops.append(ld(KD + 4 * g + jj, 8, S_KN, 1024 * jj))
    ops.append((4, lambda: E.e(f"s_mov_b32 s{S_VN}, s{S_KN}")))
    ops.append(upd(S_KN))
    if pf and PFD:
        ops += pf_ops()
    return ops


def upd(sp):
    def f():
        if FIXPTR:
            return
        E.e(f"s_add_u32 s{sp}, s{sp}, 0x8000")
        E.e(f"s_cmp_eq_u32 s{sp}, s{S_ENDA}")
        E.e(f"s_cselect_b32 s{sp}, s{S_STARTB}, s{sp}")
        E.e(f"s_cmp_eq_u32 s{sp}, s{S_ENDB}")
        E.e(f"s_cselect_b32 s{sp}, s{S_OOB}, s{sp}")
    return (20, f)


def pf_ops():
    return [(DMA_COST, lambda: E.e(f"buffer_load_dword v{V_PFD}, v{V_PF}, s[12:15], s{S_PFK} offen")),
            (DMA_COST, lambda: E.e(f"buffer_load_dword v{V_PFD + 1}, v{V_PF}, s[8:11], s{S_PFK} offen")),
            (4, lambda: E.e(f"s_add_u32 s{S_PFK}, s{S_PFK}, 0x8000"))]


def sm_stream(sbuf, pairs, first):
    ops = []
    n = len(pairs)
    st = {"first": first}

    def T(idx):
        return TMP + 2 * (idx % 4)

    def F(idx):
        k = pairs[idx]
        r = 32 * sbuf + 2 * k
        t = T(idx)
        ops.append((4, lambda: E.e(f"v_fma_f32 v{t}, v{r}, s{S_C}, v{V_NMC}")))
        ops.append((4, lambda: E.e(f"v_fma_f32 v{t + 1}, v{r + 1}, s{S_C}, v{V_NMC}")))

    def X(idx):
        t = T(idx)
        ops.append((8, lambda: E.e(f"v_exp_f32 v{t}, v{t}")))
        ops.append((8, lambda: E.e(f"v_exp_f32 v{t + 1}, v{t + 1}")))

    def A(idx):
        k = pairs[idx]
        t = T(idx)
        p = P0 + 16 * sbuf + k
        if st["first"]:
            st["first"] = False
            ops.append((4, lambda: E.e(f"v_mov_b32 v{V_SA}, v{t}")))
            ops.append((4, lambda: E.e(f"v_mov_b32 v{V_SB}, v{t + 1}")))
        else:
            ops.append((4, lambda: E.e(f"v_add_f32 v{V_SA}, v{V_SA}, v{t}")))
            ops.append((4, lambda: E.e(f"v_add_f32 v{V_SB}, v{V_SB}, v{t + 1}")))
        ops.append((4, lambda: E.e(f"v_cvt_pk_bf16_f32 v{p}, v{t}, v{t + 1}")))

    for i in range(n + 2):
        if i < n:
            F(i)
        if 1 <= i <= n:
            X(i - 1)
        if i >= 2:
            A(i - 2)
    if NOSM:
        return []
    return ops


def mask_ops(sbuf, b):
    ops = []
    for q in range(4):
        for r4 in range(4):
            r = 4 * q + r4
            o = 32 * b + 8 * q + r4
            ops.append((4, lambda o=o, r4=r4: E.e(f"v_cmp_lt_i32 s[{S_MK + 2 * r4}:{S_MK + 2 * r4 + 1}], v{V_THR}, {o}")))
        for r4 in range(4):
            r = 4 * q + r4
            reg = S_(sbuf, b) + r
            ops.append((4, lambda reg=reg, r4=r4: E.e(f"v_cndmask_b32 v{reg}, v{reg}, v{V_NEG}, s[{S_MK + 2 * r4}:{S_MK + 2 * r4 + 1}]")))
    return ops


def run_ops(ops):
    for c, f in ops:
        f()


def schedule(mf, fixed, stream, first_gap, last_gap):
    n = len(mf)
    free = []
    for g in range(n):
        c = sum(x[0] for x in fixed[g]) + 2
        free.append(max(0, BUDGET - c) if first_gap <= g <= last_gap else 0)
    T = sum(x[0] for x in stream)
    F = sum(free)
    scale = T / F if F > 0 else 0
    credit = 0.0
    si = 0
    for g in range(n):
        mf[g]()
        run_ops(fixed[g])
        if first_gap <= g <= last_gap:
            credit += free[g] * scale
            while si < len(stream) and (credit >= stream[si][0] * 0.5 or g == last_gap):
                credit -= stream[si][0]
                stream[si][1]()
                si += 1
    assert si == len(stream)


_rare_sites = []


def check_and_accumulate(par, tag):
    E.e(f"v_add_f32 v{V_SA}, v{V_SA}, v{V_SB}")
    E.e(f"v_cmp_nle_f32 vcc, v{V_SA}, v{V_THRC}")
    E.e("s_nop 3")
    E.e(f"s_cbranch_vccz .Lok_{tag}")
    E.e(f"s_getpc_b64 s[{S_RET}:{S_RET + 1}]")
    E.e(f"s_branch .Lrare{par}")
    E.label(f".Lok_{tag}")
    E.e(f"v_add_f32 v{V_L}, v{V_L}, v{V_SA}")


def b_tail_fixed(fixed, kslot_next, dma):
    def bar():
        if STAMP2:
            E.e("s_waitcnt lgkmcnt(0)")
            E.e("s_memtime s[98:99]")
            E.e("s_waitcnt lgkmcnt(0)")
            E.e(f"v_cmp_eq_u32 vcc, s96, v{V_LANE}")
            E.e("v_mov_b32 v224, s98")
            E.e("s_nop 1")
            E.e("v_cndmask_b32 v222, v222, v224, vcc")
        E.e(f"s_waitcnt vmcnt({2 if PFD else 0}) lgkmcnt(0)")
        E.lds_drain()
        E.e("s_barrier")
        if STAMP2:
            E.e("s_memtime s[98:99]")
            E.e("s_waitcnt lgkmcnt(0)")
            E.e("v_mov_b32 v224, s98")
            E.e("v_cndmask_b32 v223, v223, v224, vcc")
            E.e("s_add_u32 s96, s96, 1")
    fixed[BAR_GAP].append((8, bar))
    ng = 32 - BAR_GAP
    idx = 0
    per = (LK + ng - 1) // ng
    for g in range(BAR_GAP, 32):
        for _ in range(per):
            if idx < LK:
                fixed[g].append((4, lambda i=idx: k_read(i, kslot_next)))
                idx += 1
    nd = 0
    for g in range(BAR_GAP, 32):
        for _ in range(DMA_TAILPG):
            if dma:
                fixed[g].append(dma.pop(0))
    return dma


NDMA_TAIL = DMA_TAILPG * (32 - BAR_GAP)


def phase_a(par, dma_rest, with_mfma=True, tag=""):
    nb = 1 - par
    mf = []
    fixed = [[] for _ in range(32)]
    for i in range(32):
        if with_mfma:
            mf.append(lambda i=i: qk_mfma(i, nb))
            if i + LK < 32:
                fixed[i].append((4, lambda i=i: k_read(i + LK, nb)))
        else:
            mf.append(lambda: None)
    g = 0
    for op in dma_rest:
        fixed[g].append(op)
        g += DMA_STRIDE if op[0] > 4 else 0
        g = min(g, 31)
    g0 = 32 - LV
    for k in range(LV):
        fixed[g0 + k - 1].append((4, lambda k=k: v_read(k, par, 0)))
        fixed[g0 + k - 1].append((4, lambda k=k: v_read(k, par, 1)))
    stream = sm_stream(par, list(range(N1 // 2, 16)), first=(N1 == 0))
    schedule(mf, fixed, stream, 0, 29)
    check_and_accumulate(par, tag)


def phase_b(par, masked, last):
    nb = 1 - par
    mf = [lambda i=i: pv_mfma(i, par) for i in range(32)]
    fixed = [[] for _ in range(32)]
    for i in range(32):
        if i + LV < 32:
            fixed[i].append((4, lambda i=i: v_read(i + LV, par, 0)))
            fixed[i].append((4, lambda i=i: v_read(i + LV, par, 1)))
    stream = []
    dma = []
    if not last:
        if masked:
            stream += mask_ops(nb, 0)
        stream += sm_stream(nb, list(range(0, N1 // 2)), first=True)
        if masked:
            stream += mask_ops(nb, 1)
        dma = dma_ops(nb, par)
        dma = b_tail_fixed(fixed, par, dma)
    schedule(mf, fixed, stream, 1 if not masked else 1, BAR_GAP - 1)
    return dma


def set_thr(off_tiles_from_end):
    E.e(f"s_add_u32 s{S_TMP}, s{S_T0}, s{S_N}")
    E.e(f"s_sub_u32 s{S_TMP}, s{S_TMP}, {off_tiles_from_end}")
    E.e(f"s_lshl_b32 s{S_TMP}, s{S_TMP}, 6")
    E.e(f"v_subrev_u32 v{V_THR}, s{S_TMP}, v{V_QREL}")


def iteration(par, masked, tag, dma_in):
    phase_a(par, dma_in, True, tag)
    return phase_b(par, masked, False)


def tile_max(sbuf, dst, t1):
    base = 32 * sbuf
    E.e(f"v_max3_f32 v{dst}, v{base}, v{base + 1}, v{base + 2}")
    E.e(f"v_max3_f32 v{t1}, v{base + 3}, v{base + 4}, v{base + 5}")
    r = 6
    acc = [dst, t1]
    k = 0
    while r + 1 < 32:
        E.e(f"v_max3_f32 v{acc[k]}, v{acc[k]}, v{base + r}, v{base + r + 1}")
        k ^= 1
        r += 2
    E.e(f"v_max_f32 v{dst}, v{dst}, v{t1}")
    E.e(f"v_mov_b32 v{t1}, v{dst}")
    E.e("s_nop 1")
    E.e(f"v_permlane32_swap_b32 v{dst}, v{t1}")
    E.e(f"v_max_f32 v{dst}, v{dst}, v{t1}")


def flag_addr():
    E.e(f"s_lshl_b32 s{S_TMP}, s{S_PID}, 2")
    E.e(f"s_add_u32 s{S_TMP}, s{S_TMP}, s{S_WAVE}")
    E.e(f"s_and_b32 s{S_SHIFT}, s{S_TMP}, 31")
    E.e(f"s_lshr_b32 s{S_TMP}, s{S_TMP}, 5")
    E.e(f"s_lshl_b32 s{S_TMP}, s{S_TMP}, 2")
    E.e(f"s_add_u32 s{S_TMP}, s{S_TMP}, 64")
    E.e(f"v_mov_b32 v{V_T2}, s{S_TMP}")
    E.e(f"s_lshl_b32 s{S_TMP2}, 1, s{S_SHIFT}")
    E.e(f"v_mov_b32 v{V_T3}, s{S_TMP2}")


def flag_test():
    E.e(f"v_readfirstlane_b32 s{S_TMP3}, v{V_FLAG}")
    E.e("s_nop 3")
    E.e(f"s_lshr_b32 s{S_TMP3}, s{S_TMP3}, s{S_SHIFT}")
    E.e(f"s_and_b32 s{S_TMP3}, s{S_TMP3}, 1")
    E.e(f"s_cmp_lg_u32 s{S_TMP3}, 0")


def partner_loads():
    E.e(f"s_mov_b32 s{S_SOFF}, 0")
    for g in range(16):
        E.e(f"buffer_load_dwordx4 {ar(A_Q2 + 4 * g, 4)}, v{V_WSOFF}, s[20:23], s{S_SOFF} offen offset:{1024 * (g % 4)} sc1")
        if g % 4 == 3:
            E.e(f"s_add_u32 s{S_SOFF}, s{S_SOFF}, 0x1000")
    E.e(f"buffer_load_dword v{V_OL}, v{V_WSOFF}, s[20:23], s{S_SOFF} offen sc1")
    E.e(f"buffer_load_dword v{V_OM}, v{V_WSOFF}, s[20:23], s{S_SOFF} offen offset:4 sc1")


def store_epilogue(partner):
    WA = 96
    RA = 104
    GO = 108
    RB = 112
    if EPLDS:
        L = V_LANE
        E.e(f"s_add_u32 s{S_TMP}, s{S_WB}, 0x20000")
        E.e(f"v_and_b32 v{V_T0}, 31, v{L}")
        E.e(f"v_lshrrev_b32 v{V_T1}, 5, v{L}")
        E.e(f"v_and_b32 v{V_T2}, 15, v{L}")
        E.e(f"v_xor_b32 v{V_T2}, v{V_T2}, v{V_T1}")
        E.e(f"v_lshl_add_u32 v{V_T0}, v{V_T0}, 8, s{S_TMP}")
        for k in range(8):
            E.e(f"v_xor_b32 v{WA + k}, {2 * k}, v{V_T2}")
            E.e(f"v_lshl_add_u32 v{WA + k}, v{WA + k}, 4, v{V_T0}")
        E.e(f"v_lshrrev_b32 v{V_T1}, 4, v{L}")
        E.e(f"v_and_b32 v{V_T2}, 15, v{L}")
        for i in range(4):
            E.e(f"v_add_u32 v{RA + i}, {4 * i}, v{V_T1}")
            E.e(f"v_xor_b32 v{V_T3}, v{RA + i}, v{V_T2}")
            E.e(f"v_lshlrev_b32 v{V_T3}, 4, v{V_T3}")
            E.e(f"v_lshl_add_u32 v{RA + i}, v{RA + i}, 8, v{V_T3}")
            E.e(f"v_add_u32 v{RA + i}, s{S_TMP}, v{RA + i}")
        E.e(f"s_lshl_b32 s{S_TMP2}, s{S_WAVE}, 14")
        E.e(f"v_lshlrev_b32 v{GO}, 9, v{V_T1}")
        E.e(f"v_lshl_add_u32 v{GO}, v{V_T2}, 4, v{GO}")
        E.e(f"v_add_u32 v{GO}, s{S_TMP2}, v{GO}")
    for j in range(8):
        x = EP + 32 * (j % 2)
        for r_ in range(16):
            E.e(f"v_accvgpr_read_b32 v{x + r_}, a{A_O + 16 * j + r_}")
        if partner:
            for k in range(8):
                E.e(f"v_accvgpr_read_b32 v{x + 16 + k}, a{A_Q2 + 8 * j + k}")
        for r_ in range(16):
            E.e(f"v_mul_f32 v{x + r_}, v{x + r_}, v{V_ALPHA}")
        if partner:
            for k in range(8):
                E.e(f"v_lshlrev_b32 v{TMP + k}, 16, v{x + 16 + k}")
                E.e(f"v_and_b32 v{TMP + 8 + k}, 0xffff0000, v{x + 16 + k}")
            for k in range(8):
                E.e(f"v_fma_f32 v{x + 2 * k}, v{TMP + k}, v{V_FOT}, v{x + 2 * k}")
                E.e(f"v_fma_f32 v{x + 2 * k + 1}, v{TMP + 8 + k}, v{V_FOT}, v{x + 2 * k + 1}")
        for k in range(8):
            E.e(f"v_cvt_pk_bf16_f32 v{x + 16 + k}, v{x + 2 * k}, v{x + 2 * k + 1}")
        E.e("s_nop 1")
        for gp in range(2):
            y = x + 16 + 4 * gp
            E.e(f"v_permlane32_swap_b32 v{y}, v{y + 2}")
            E.e(f"v_permlane32_swap_b32 v{y + 1}, v{y + 3}")
        for gp in range(2):
            y = x + 16 + 4 * gp
            if EPLDS:
                E.e(f"ds_write_b128 v{WA + 2 * (j % 4) + gp}, {vr(y, 4)}")
            else:
                E.e(f"buffer_store_dwordx4 {vr(y, 4)}, v{V_QOFF}, s[16:19], s{S_QB} offen offset:{64 * j + 32 * gp}")
        if EPLDS and j % 4 == 3:
            hh = j // 4
            for i in range(8):
                E.e(f"ds_read_b128 {vr(RB + 4 * i, 4)}, v{RA + i % 4} offset:{4096 * (i // 4)}")
            E.e(f"s_mov_b32 s{S_SOFF}, s{S_QB}")
            for i in range(8):
                E.e(f"s_waitcnt lgkmcnt({7 - i})")
                E.e(f"buffer_store_dwordx4 {vr(RB + 4 * i, 4)}, v{GO}, s[16:19], s{S_SOFF} offen offset:{256 * hh}")
                if i < 7:
                    E.e(f"s_add_u32 s{S_SOFF}, s{S_SOFF}, 0x800")


def stamp(i, real=False):
    if not STAMP:
        return
    assert not E.ldsq or True
    E.e("s_memrealtime s[98:99]" if real else "s_memtime s[98:99]")
    E.e("s_waitcnt lgkmcnt(0)")
    E.lds_drain_keep()
    E.e(f"s_mov_b32 s{86 + i}, s98")


def gen():
    E.block("setup")
    E.e("s_cmp_ge_u32 s2, 256")
    E.e("s_cbranch_scc1 .Lend")
    stamp(0)
    stamp(1, True)
    if STAMP2:
        E.e("s_mov_b32 s96, 0")
        E.e("v_mov_b32 v222, 0")
        E.e("v_mov_b32 v223, 0")
    E.e("s_load_dwordx4 s[4:7], s[0:1], 0")
    E.e("s_load_dwordx4 s[8:11], s[0:1], 16")
    E.e("s_load_dwordx4 s[12:15], s[0:1], 32")
    E.e(f"v_lshrrev_b32 v{V_T0}, 6, v0")
    E.e(f"v_and_b32 v{V_LANE}, 63, v0")
    E.e("s_nop 0")
    E.e(f"v_readfirstlane_b32 s{S_WAVE}, v{V_T0}")
    E.e("s_and_b32 s64, s2, 7")
    E.e("s_lshr_b32 s65, s2, 3")
    E.e("s_and_b32 s66, s65, 1")
    E.e("s_lshl_b32 s64, s64, 1")
    E.e("s_add_u32 s64, s64, s66")
    E.e("s_lshr_b32 s65, s65, 1")
    E.e("s_and_b32 s67, s65, 1")
    E.e("s_lshl_b32 s85, s65, 16")
    E.e("s_mov_b32 s97, s85")
    E.e("s_lshr_b32 s65, s65, 1")
    E.e(f"s_lshl_b32 s{S_PID}, s64, 3")
    E.e(f"s_add_u32 s{S_PID}, s{S_PID}, s65")
    E.e("s_lshl_b32 s68, s64, 20")
    E.e("s_waitcnt lgkmcnt(0)")
    if FINE == 2:
        stamp(6)
    E.e("s_mov_b32 s70, s6"); E.e("s_mov_b32 s71, s7")
    E.e("s_mov_b32 s72, s8"); E.e("s_mov_b32 s73, s9")
    E.e("s_mov_b32 s74, s10"); E.e("s_mov_b32 s75, s11")
    E.e("s_mov_b32 s76, s12"); E.e("s_mov_b32 s77, s13")
    E.e("s_mov_b32 s78, s14"); E.e("s_mov_b32 s79, s15")
    for (srd, lo, hi) in ((4, 4, 5), (8, 70, 71), (12, 72, 73), (16, 74, 75)):
        E.e(f"s_add_u32 s{srd}, s{lo}, s68")
        E.e(f"s_addc_u32 s{srd + 1}, s{hi}, 0")
        E.e(f"s_and_b32 s{srd + 1}, s{srd + 1}, 0xffff")
        E.e(f"s_mov_b32 s{srd + 2}, 0x100000")
        E.e(f"s_mov_b32 s{srd + 3}, 0x00020000")
    E.e("s_mov_b32 s20, s78"); E.e("s_and_b32 s21, s79, 0xffff")
    E.e("s_mov_b32 s22, 0x10000000"); E.e("s_mov_b32 s23, 0x00020000")
    E.e("s_mov_b32 s24, s76"); E.e("s_and_b32 s25, s77, 0xffff")
    E.e("s_mov_b32 s26, 256"); E.e("s_mov_b32 s27, 0x00020000")
    E.e(f"s_mov_b32 s{S_C}, {f2u(C_SCALE):#x}")
    E.e(f"s_lshl_b32 s{S_WB}, s{S_WAVE}, 13")
    E.e(f"s_mov_b32 s{S_OOB}, 0x40000000")
    E.e("s_lshl_b32 s69, s65, 1")
    E.e("s_sub_u32 s80, 32, s69")
    E.e("s_add_u32 s81, s69, 2")
    E.e("s_sub_u32 s82, 15, s65")
    E.e("s_lshl_b32 s82, s82, 16")
    E.e("s_lshl_b32 s83, s65, 16")
    E.e(f"s_min_u32 s84, s80, {N0}")
    E.e("s_sub_u32 s85, s80, s84")
    E.e("s_cmp_eq_u32 s67, 0")
    E.e("s_cbranch_scc0 .Lwg1")
    E.e(f"s_mov_b32 s{S_QB}, s82")
    E.e(f"s_mov_b32 s{S_T0}, 0")
    E.e(f"s_mov_b32 s{S_N}, s84")
    E.e(f"s_mov_b32 s{S_NSEG}, 1")
    E.e(f"s_cmp_lg_u32 s85, 0")
    E.e(f"s_cselect_b32 s{S_ACT}, 1, 0")
    E.e(f"s_mov_b32 s{S_ENDA}, 1")
    E.e(f"s_mov_b32 s{S_STARTB}, 1")
    E.e(f"s_lshl_b32 s{S_ENDB}, s84, 15")
    E.e("s_branch .Lsegdone")
    E.label(".Lwg1")
    E.e(f"s_cmp_lg_u32 s85, 0")
    E.e(f"s_cselect_b32 s{S_NSEG}, 2, 1")
    E.e(f"s_cbranch_scc0 .Lwg1_single")
    E.e(f"s_mov_b32 s{S_QB}, s82")
    E.e(f"s_mov_b32 s{S_T0}, s84")
    E.e(f"s_mov_b32 s{S_N}, s85")
    E.e(f"s_mov_b32 s{S_ACT}, 2")
    E.e(f"s_mov_b32 s{S_QB2}, s83")
    E.e(f"s_mov_b32 s{S_T02}, 0")
    E.e(f"s_mov_b32 s{S_N2}, s81")
    E.e(f"s_mov_b32 s{S_ACT2}, 0")
    E.e(f"s_lshl_b32 s{S_ENDA}, s80, 15")
    E.e(f"s_mov_b32 s{S_STARTB}, 0")
    E.e(f"s_lshl_b32 s{S_ENDB}, s81, 15")
    E.e("s_branch .Lsegdone")
    E.label(".Lwg1_single")
    E.e(f"s_mov_b32 s{S_QB}, s83")
    E.e(f"s_mov_b32 s{S_T0}, 0")
    E.e(f"s_mov_b32 s{S_N}, s81")
    E.e(f"s_mov_b32 s{S_ACT}, 0")
    E.e(f"s_mov_b32 s{S_ENDA}, 1")
    E.e(f"s_mov_b32 s{S_STARTB}, 1")
    E.e(f"s_lshl_b32 s{S_ENDB}, s81, 15")
    E.label(".Lsegdone")
    L = V_LANE
    E.e(f"v_and_b32 v{V_T0}, 31, v{L}")
    E.e(f"v_lshrrev_b32 v{V_T1}, 5, v{L}")
    E.e(f"s_lshl_b32 s{S_TMP}, s{S_WAVE}, 5")
    E.e(f"v_add_u32 v{V_T2}, s{S_TMP}, v{V_T0}")
    E.e(f"v_lshlrev_b32 v{V_QOFF}, 9, v{V_T2}")
    E.e(f"v_lshl_add_u32 v{V_QOFF}, v{V_T1}, 4, v{V_QOFF}")
    E.e(f"v_and_b32 v{V_T3}, 15, v{L}")
    for j in range(8):
        E.e(f"v_add_u32 v{KA + j}, {2 * j}, v{V_T1}")
        E.e(f"v_xor_b32 v{KA + j}, v{KA + j}, v{V_T3}")
        E.e(f"v_lshlrev_b32 v{KA + j}, 4, v{KA + j}")
        E.e(f"v_lshl_add_u32 v{KA + j}, v{V_T0}, 9, v{KA + j}")
    E.e(f"v_bfe_u32 v{TMP}, v{L}, 2, 2")
    E.e(f"v_and_b32 v{TMP + 1}, 3, v{L}")
    E.e(f"v_bfe_u32 v{TMP + 2}, v{L}, 4, 1")
    E.e(f"v_lshl_add_u32 v{TMP + 3}, v{V_T1}, 2, v{TMP}")
    E.e(f"v_lshlrev_b32 v{TMP + 3}, 9, v{TMP + 3}")
    E.e(f"v_lshl_add_u32 v{TMP + 3}, v{TMP + 2}, 5, v{TMP + 3}")
    E.e(f"v_lshl_add_u32 v{TMP + 3}, v{TMP + 1}, 3, v{TMP + 3}")
    E.e(f"v_add_u32 v{TMP + 3}, 0x10000, v{TMP + 3}")
    for i in range(4):
        E.e(f"v_xor_b32 v{VA + i}, {i}, v{TMP}")
        E.e(f"v_lshl_add_u32 v{VA + i}, v{VA + i}, 6, v{TMP + 3}")
    E.e(f"v_lshl_add_u32 v{TMP + 4}, v{V_T1}, 9, s{S_WB}")
    for j in range(8):
        E.e(f"v_add_u32 v{KD + j}, {2 * j % 16}, v{V_T1}")
        E.e(f"v_xor_b32 v{KD + j}, v{KD + j}, v{V_T0}")
        E.e(f"v_lshl_add_u32 v{KD + j}, v{KD + j}, 4, v{TMP + 4}")
        if j >= 4:
            E.e(f"v_add_u32 v{KD + j}, 0x1000, v{KD + j}")
    for g in range(2):
        for o in range(2):
            d = VD + 2 * g + o
            E.e(f"v_add_u32 v{d}, {2 * o}, v{V_T1}")
            E.e(f"v_lshlrev_b32 v{d}, 2, v{d}")
            E.e(f"v_xor_b32 v{d}, v{d}, v{V_T0}")
            E.e(f"v_lshl_add_u32 v{d}, v{d}, 4, v{TMP + 4}")
            if g:
                E.e(f"v_add_u32 v{d}, 0x1000, v{d}")
    E.e(f"v_mov_b32 v{V_NEG}, {NEGBIG:#x}")
    E.e(f"v_mov_b32 v{V_THRC}, {f2u(THR):#x}")
    E.e(f"s_mul_i32 s{S_TMP}, s{S_WAVE}, 0x9000")
    E.e(f"s_lshl_b32 s{S_TMP2}, s{S_PID}, 18")
    E.e(f"s_add_u32 s{S_TMP}, s{S_TMP}, s{S_TMP2}")
    E.e(f"v_lshl_add_u32 v{V_WSOFF}, v{L}, 4, s{S_TMP}")
    E.e(f"v_and_b32 v{V_PF}, 7, v{L}")
    E.e(f"s_lshl_b32 s{S_TMP}, s65, 12")
    E.e(f"s_lshl_b32 s{S_TMP2}, s{S_WAVE}, 10")
    E.e(f"s_add_u32 s{S_TMP}, s{S_TMP}, s{S_TMP2}")
    E.e(f"v_lshl_add_u32 v{V_PF}, v{V_PF}, 7, s{S_TMP}")
    E.e(f"s_lshl_b32 s{S_KN}, s{S_T0}, 15")
    E.e(f"s_mov_b32 s{S_VN}, s{S_KN}")
    E.e(f"s_mov_b32 s{S_FIRST}, 1")
    E.e(f"s_mov_b32 s{S_PUB}, 0")
    E.e(f"s_mov_b32 s{S_HAVE}, 0")
    if CODEPF:
        E.e("s_getpc_b64 s[90:91]")
        E.label(".Lpc0")
        E.e(f"v_lshlrev_b32 v{TMP}, 7, v{L}")
        E.e(f"v_mov_b32 v{TMP + 1}, 0")
        E.e(f"v_add_co_u32 v{TMP}, vcc, s90, v{TMP}")
        E.e("s_nop 1")
        E.e(f"v_mov_b32 v{TMP + 2}, s91")
        E.e(f"v_addc_co_u32 v{TMP + 1}, vcc, v{TMP + 2}, v{TMP + 1}, vcc")
        for k in range(CODEPF):
            E.e(f"global_load_dword v{V_PFD}, v[{TMP}:{TMP + 1}], off")
            E.e(f"v_add_co_u32 v{TMP}, vcc, 0x2000, v{TMP}")
            E.e("s_nop 1")
            E.e(f"v_addc_co_u32 v{TMP + 1}, vcc, 0, v{TMP + 1}, vcc")
    if FINE == 2:
        stamp(7)
    if QLDS:
        E.e(f"s_lshl_b32 s{S_TMP}, s{S_WAVE}, 14")
        E.e(f"s_cmp_lt_u32 s{S_WAVE}, 2")
        E.e(f"s_cselect_b32 s{S_TMP2}, 2, 1")
        E.e(f"s_lshl_b32 s{S_TMP2}, s{S_TMP2}, 16")
        E.e(f"s_add_u32 s{S_QS}, s{S_TMP}, s{S_TMP2}")
        E.e(f"s_add_u32 s{S_TMP}, s{S_QB}, s{S_WB}")
        for hf in range(2):
            for g in range(2):
                E.e(f"s_add_u32 m0, s{S_QS}, {8192 * hf + 4096 * g}")
                E.e("s_nop 0")
                for jj in range(4):
                    E.e(f"buffer_load_dwordx4 v{KD + 4 * g + jj}, s[4:7], s{S_TMP} offen offset:{1024 * jj} lds")
            if hf == 0:
                E.e(f"s_add_u32 s{S_TMP}, s{S_TMP}, 0x2000")
    else:
        for s_ in range(16):
            E.e(f"buffer_load_dwordx4 {ar(A_Q + 4 * s_, 4)}, v{V_QOFF}, s[4:7], s{S_QB} offen offset:{32 * s_}")
    if FINE == 2:
        stamp(8)
    d0 = dma_ops(0, 0, pf=False)
    run_ops(d0[10:])
    if FINE == 2:
        stamp(9)
    def later():
        run_ops(d0[:10])
        d1 = dma_ops(1, 1, pf=False)[10:]
        run_ops(d1)
        if PFD:
            E.e(f"s_mul_i32 s{S_PFK}, s67, {N0 * 32768}")
            E.e(f"s_add_u32 s{S_PFK}, s{S_PFK}, 0x8000")
            for _ in range(PFD):
                run_ops(pf_ops())
    nyoung = 0
    if not LATE:
        later()
        nyoung = 16 + 2 * PFD
    if STAMP and FINE == 1:
        stamp(6)
        E.e(f"s_waitcnt vmcnt({nyoung + 8 + 15})")
        stamp(7)
        E.e(f"s_waitcnt vmcnt({nyoung + 8})")
        stamp(8)
        E.e(f"s_waitcnt vmcnt({nyoung})")
        stamp(9)
    E.e(f"s_waitcnt vmcnt({nyoung})")
    E.e("s_barrier")
    if LATE:
        later()
    if QLDS:
        for j in range(8):
            E.e(f"v_add_u32 v{TMP + j}, s{S_QS}, v{KA + j}")
        for s_ in range(16):
            E.e(f"ds_read_b128 {ar(A_Q + 4 * s_, 4)}, v{TMP + s_ % 8} offset:{256 * (s_ // 8)}")
            if s_ == 7:
                E.e("s_waitcnt lgkmcnt(0)")
        E.e("s_waitcnt lgkmcnt(0)")

    E.block("prologue")
    E.label(".Lseg")
    E.e(f"s_lshr_b32 s{S_TMP}, s{S_QB}, 9")
    E.e(f"v_lshrrev_b32 v{V_T0}, 9, v{V_QOFF}")
    E.e(f"v_add_u32 v{V_QREL}, s{S_TMP}, v{V_T0}")
    E.e(f"v_lshrrev_b32 v{V_T1}, 5, v{V_LANE}")
    E.e(f"v_lshlrev_b32 v{V_T1}, 2, v{V_T1}")
    E.e(f"v_sub_u32 v{V_QREL}, v{V_QREL}, v{V_T1}")
    for i in range(128):
        E.e(f"v_accvgpr_write_b32 a{A_O + i}, 0")
    E.e(f"v_mov_b32 v{V_L}, 0")
    stamp(2)
    for i in range(LK):
        k_read(i, 0)
    for i in range(32):
        qk_mfma(i, 0)
        if i + LK < 32:
            k_read(i + LK, 0)
    E.e(f"s_lshl_b32 s{S_TMP}, s{S_T0}, 6")
    E.e(f"v_subrev_u32 v{V_THR}, s{S_TMP}, v{V_QREL}")
    E.e("s_nop 7")
    E.e("s_nop 3")
    run_ops(mask_ops(0, 0))
    run_ops(mask_ops(0, 1))
    tile_max(0, V_M, V_T0)
    E.e(f"v_mul_f32 v{V_NMC}, s{S_C}, v{V_M}")
    E.e(f"v_sub_f32 v{V_NMC}, 0, v{V_NMC}")
    run_ops(sm_stream(0, list(range(0, N1 // 2)), first=True))
    E.e(f"s_cmp_eq_u32 s{S_FIRST}, 1")
    E.e("s_cbranch_scc1 .Lpro1")
    E.e("s_waitcnt vmcnt(0)")
    E.e(f"s_cmp_eq_u32 s{S_PUB}, 1")
    E.e("s_cbranch_scc0 .Lpro1")
    flag_addr()
    E.e("s_mov_b64 exec, 1")
    E.e(f"buffer_atomic_or v{V_T3}, v{V_T2}, s[24:27], 0 offen sc1")
    E.e("s_mov_b64 exec, -1")
    E.label(".Lpro1")
    E.e(f"s_waitcnt vmcnt({2 * PFD + 4 * BULK}) lgkmcnt(0)")
    E.lds_drain()
    E.e("s_barrier")
    stamp(3)
    E.e(f"s_cmp_eq_u32 s{S_NSEG}, 2")
    E.e("s_cbranch_scc0 .Lpro2")
    for s_ in range(16):
        E.e(f"buffer_load_dwordx4 {ar(A_Q2 + 4 * s_, 4)}, v{V_QOFF}, s[4:7], s{S_QB2} offen offset:{32 * s_}")
    E.label(".Lpro2")
    for i in range(LK):
        k_read(i, 1)
    dma = dma_ops(0, 1)
    run_ops(dma[:NDMA_TAIL])
    dma_rest_even = dma[NDMA_TAIL:]
    entry_q = list(E.ldsq)
    E.e(f"s_cmp_eq_u32 s{S_N}, 2")
    E.e("s_cbranch_scc1 .Lt0m")
    E.e(f"s_sub_u32 s{S_CNT}, s{S_N}, 2")
    E.e(f"s_lshr_b32 s{S_CNT}, s{S_CNT}, 1")

    E.block("iter0")
    E.label(".Lloop")
    r = iteration(0, False, "i0", dma_ops(0, 1)[NDMA_TAIL:])
    assert list(E.ldsq) == entry_q
    E.e(f"s_sub_u32 s{S_CNT}, s{S_CNT}, 1")
    E.e(f"s_cmp_eq_u32 s{S_CNT}, 0")
    E.e("s_cbranch_scc1 .Lt1m_pre")
    E.block("iter1")
    iteration(1, False, "i1", dma_ops(1, 0)[NDMA_TAIL:])
    assert list(E.ldsq) == entry_q
    E.e("s_branch .Lloop")
    E.block("iter1m")
    E.label(".Lt1m_pre")
    E.e(f"s_cmp_eq_u32 s{S_ACT}, 1")
    E.e("s_cbranch_scc0 .Lt1m_nf")
    flag_addr()
    E.e(f"buffer_load_dword v{V_FLAG}, v{V_T2}, s[24:27], 0 offen sc0 sc1")
    E.label(".Lt1m_nf")
    set_thr(2)
    iteration(1, True, "i1m", dma_ops(1, 0)[NDMA_TAIL:])
    assert list(E.ldsq) == entry_q
    E.block("iter0m")
    E.e(f"s_cmp_eq_u32 s{S_ACT}, 1")
    E.e("s_cbranch_scc0 .Lt0m")
    flag_test()
    E.e("s_cbranch_scc0 .Lt0m_again")
    partner_loads()
    E.e(f"s_mov_b32 s{S_HAVE}, 1")
    E.e("s_branch .Lt0m")
    E.label(".Lt0m_again")
    E.e(f"buffer_load_dword v{V_FLAG}, v{V_T2}, s[24:27], 0 offen sc0 sc1")
    E.label(".Lt0m")
    set_thr(1)
    iteration(0, True, "i0m", dma_ops(0, 1)[NDMA_TAIL:])
    assert list(E.ldsq) == entry_q
    E.block("final1")
    E.e(f"s_cmp_eq_u32 s{S_ACT}, 1")
    E.e("s_cbranch_scc0 .Lf1")
    E.e(f"s_cmp_eq_u32 s{S_HAVE}, 1")
    E.e("s_cbranch_scc1 .Lf1")
    flag_test()
    E.e("s_cbranch_scc0 .Lf1")
    partner_loads()
    E.e(f"s_mov_b32 s{S_HAVE}, 1")
    E.label(".Lf1")
    E.e("s_waitcnt lgkmcnt(0)")
    E.lds_drain()
    phase_a(1, dma_ops(1, 0)[NDMA_TAIL:], with_mfma=False, tag="f1")
    phase_b(1, False, True)
    E.e("s_waitcnt lgkmcnt(0)")
    E.lds_drain()

    E.block("epilogue")
    stamp(4)
    E.e(f"v_mov_b32 v{V_T0}, v{V_L}")
    E.e("s_nop 1")
    E.e(f"v_permlane32_swap_b32 v{V_L}, v{V_T0}")
    E.e(f"v_add_f32 v{V_L}, v{V_L}, v{V_T0}")
    E.e(f"s_cmp_eq_u32 s{S_ACT}, 1")
    E.e("s_cbranch_scc1 .Lcombine")
    E.e(f"s_cmp_eq_u32 s{S_ACT}, 2")
    E.e("s_cbranch_scc1 .Lpublish")
    E.label(".Lstore")
    E.e(f"v_rcp_f32 v{V_ALPHA}, v{V_L}")
    E.e("s_nop 7")
    E.e("s_nop 3")
    store_epilogue(False)
    stamp(5)
    E.e(f"s_cmp_eq_u32 s{S_NSEG}, 2")
    E.e("s_cbranch_scc0 .Lfin")
    if STAMP:
        for i in range(4):
            E.e(f"s_mov_b32 s{86 + 6 + i}, s{86 + 2 + i}")
    E.label(".Lswitch")
    E.e(f"s_mov_b32 s{S_FIRST}, 0")
    E.e(f"s_mov_b32 s{S_NSEG}, 1")
    E.e(f"s_mov_b32 s{S_QB}, s{S_QB2}")
    E.e(f"s_mov_b32 s{S_T0}, s{S_T02}")
    E.e(f"s_mov_b32 s{S_N}, s{S_N2}")
    E.e(f"s_mov_b32 s{S_ACT}, s{S_ACT2}")
    for i in range(64):
        E.e(f"v_accvgpr_mov_b32 a{A_Q + i}, a{A_Q2 + i}")
    E.e("s_branch .Lseg")

    E.block("combine")
    E.label(".Lpublish")
    E.e("s_nop 7")
    E.e("s_nop 3")
    E.e(f"s_mov_b32 s{S_SOFF}, 0")
    for j in range(8):
        x = EP + 32 * (j % 2)
        for r_ in range(16):
            E.e(f"v_accvgpr_read_b32 v{x + r_}, a{A_O + 16 * j + r_}")
        for k in range(8):
            E.e(f"v_cvt_pk_bf16_f32 v{x + 16 + k}, v{x + 2 * k}, v{x + 2 * k + 1}")
        for gp in range(2):
            g = 2 * j + gp
            E.e(f"buffer_store_dwordx4 {vr(x + 16 + 4 * gp, 4)}, v{V_WSOFF}, s[20:23], s{S_SOFF} offen offset:{1024 * (g % 4)} sc1")
        if j % 2 == 1:
            E.e(f"s_add_u32 s{S_SOFF}, s{S_SOFF}, 0x1000")
    E.e(f"buffer_store_dword v{V_L}, v{V_WSOFF}, s[20:23], s{S_SOFF} offen sc1")
    E.e(f"buffer_store_dword v{V_M}, v{V_WSOFF}, s[20:23], s{S_SOFF} offen offset:4 sc1")
    E.e(f"s_mov_b32 s{S_PUB}, 1")
    if STAMP:
        stamp(5)
        for i in range(4):
            E.e(f"s_mov_b32 s{86 + 6 + i}, s{86 + 2 + i}")
    E.e("s_branch .Lswitch")
    E.label(".Lcombine")
    E.e(f"s_cmp_eq_u32 s{S_HAVE}, 1")
    E.e("s_cbranch_scc1 .Lready")
    flag_addr()
    E.label(".Lpoll")
    E.e(f"buffer_load_dword v{V_FLAG}, v{V_T2}, s[24:27], 0 offen sc0 sc1")
    E.e("s_waitcnt vmcnt(0)")
    flag_test()
    E.e("s_cbranch_scc1 .Lpolldone")
    E.e("s_sleep 8")
    E.e("s_branch .Lpoll")
    E.label(".Lpolldone")
    partner_loads()
    E.label(".Lready")
    E.e("s_waitcnt vmcnt(0)")
    E.e(f"v_max_f32 v{V_T2}, v{V_M}, v{V_OM}")
    E.e(f"v_sub_f32 v{V_T3}, v{V_M}, v{V_T2}")
    E.e(f"v_sub_f32 v{V_T1}, v{V_OM}, v{V_T2}")
    E.e(f"v_mul_f32 v{V_T3}, s{S_C}, v{V_T3}")
    E.e(f"v_mul_f32 v{V_T1}, s{S_C}, v{V_T1}")
    E.e(f"v_exp_f32 v{V_T3}, v{V_T3}")
    E.e(f"v_exp_f32 v{V_T1}, v{V_T1}")
    E.e("s_nop 0")
    E.e(f"v_mul_f32 v{V_L}, v{V_L}, v{V_T3}")
    E.e(f"v_fma_f32 v{V_L}, v{V_OL}, v{V_T1}, v{V_L}")
    E.e(f"v_rcp_f32 v{V_T0}, v{V_L}")
    E.e("s_nop 0")
    E.e(f"v_mul_f32 v{V_ALPHA}, v{V_T3}, v{V_T0}")
    E.e(f"v_mul_f32 v{V_FOT}, v{V_T1}, v{V_T0}")
    store_epilogue(True)
    stamp(5)
    E.e("s_branch .Lfin")

    for par in range(2):
        E.block(f"rare{par}")
        E.label(f".Lrare{par}")
        tile_max(par, V_T0, V_T1)
        E.e(f"v_max_f32 v{V_T0}, v{V_T0}, v{V_M}")
        E.e(f"v_sub_f32 v{V_T1}, v{V_M}, v{V_T0}")
        E.e(f"v_mul_f32 v{V_T1}, s{S_C}, v{V_T1}")
        E.e(f"v_exp_f32 v{V_ALPHA}, v{V_T1}")
        E.e(f"v_mov_b32 v{V_M}, v{V_T0}")
        E.e(f"v_mul_f32 v{V_NMC}, s{S_C}, v{V_M}")
        E.e(f"v_sub_f32 v{V_NMC}, 0, v{V_NMC}")
        E.e(f"v_mul_f32 v{V_L}, v{V_L}, v{V_ALPHA}")
        for i in range(0, 128, 4):
            for r_ in range(4):
                E.e(f"v_accvgpr_read_b32 v{TMP + 8 + r_}, a{A_O + i + r_}")
            for r_ in range(4):
                E.e(f"v_mul_f32 v{TMP + 8 + r_}, v{TMP + 8 + r_}, v{V_ALPHA}")
            for r_ in range(4):
                E.e(f"v_accvgpr_write_b32 a{A_O + i + r_}, v{TMP + 8 + r_}")
        run_ops(sm_stream(par, list(range(16)), first=True))
        E.e(f"v_add_f32 v{V_SA}, v{V_SA}, v{V_SB}")
        E.e(f"s_add_u32 s{S_RET}, s{S_RET}, 4")
        E.e(f"s_addc_u32 s{S_RET + 1}, s{S_RET + 1}, 0")
        E.e("s_nop 1")
        E.e(f"s_setpc_b64 s[{S_RET}:{S_RET + 1}]")

    E.block("end")
    E.label(".Lfin")
    if STAMP:
        E.e("s_waitcnt vmcnt(0)")
        stamp(10)
        stamp(11, True)
        E.e("s_lshl_b32 s64, s2, 2")
        E.e(f"s_add_u32 s64, s64, s{S_WAVE}")
        E.e("s_lshl_b32 s64, s64, 6")
        E.e("s_add_u32 s64, s64, 0x8000000")
        E.e("v_mov_b32 v1, s64")
        E.e("s_mov_b64 exec, 1")
        for i in range(12):
            E.e(f"v_mov_b32 v2, s{86 + i}")
            E.e(f"buffer_store_dword v2, v1, s[20:23], 0 offen offset:{4 * i}")
            E.e("s_nop 1")
        E.e("s_waitcnt vmcnt(0)")
        if STAMPD:
            E.e("s_and_b32 s64, s2, 0xffef")
            E.e(f"s_or_b32 s64, s64, s{S_WAVE}")
            E.e("s_cmp_eq_u32 s64, 0")
            E.e("s_cbranch_scc0 .Lnodbg")
            E.e("s_lshl_b32 s64, s2, 1")
            E.e("v_mov_b32 v1, s64")
            for i, sl in enumerate((2, 3, 4, 5, 10, 6, 7)):
                E.e(f"s_sub_u32 s65, s{86 + sl}, s86")
                E.e("v_mov_b32 v2, s65")
                E.e(f"buffer_store_dword v2, v1, s[24:27], 0 offen offset:{4 * i}")
                E.e("s_nop 1")
            E.e("s_sub_u32 s65, s97, s87")
            E.e("v_mov_b32 v2, s65")
            E.e("buffer_store_dword v2, v1, s[24:27], 0 offen offset:28")
            E.e("s_waitcnt vmcnt(0)")
            E.label(".Lnodbg")
        if STAMP2:
            E.e("s_mov_b64 exec, -1")
            E.e("s_lshl_b32 s64, s2, 2")
            E.e(f"s_add_u32 s64, s64, s{S_WAVE}")
            E.e("s_lshl_b32 s64, s64, 9")
            E.e("s_add_u32 s64, s64, 0x9000000")
            E.e(f"v_lshl_add_u32 v1, v{V_LANE}, 2, s64")
            E.e("buffer_store_dword v222, v1, s[20:23], 0 offen")
            E.e("buffer_store_dword v223, v1, s[20:23], 0 offen offset:256")
            E.e("s_waitcnt vmcnt(0)")
    E.label(".Lend")
    E.e("s_endpgm")


HEADER = """; Causal flash-attention forward, B=1 H=16 S=2048 D=256 bf16 (generated by work/gen.py)
; @launch grid=(256,1,1) block=(256,1,1) lds=163840
.amdgcn_target "amdgcn-amd-amdhsa--gfx950"
.text
.globl standalone__softmax_full_causal__prompt_kernel
.p2align 8
.type standalone__softmax_full_causal__prompt_kernel,@function
standalone__softmax_full_causal__prompt_kernel:
"""
FOOTER = """.section .rodata,"a"
.p2align 6
.amdhsa_kernel standalone__softmax_full_causal__prompt_kernel
  .amdhsa_next_free_vgpr 512
  .amdhsa_next_free_sgpr 102
  .amdhsa_accum_offset 256
  .amdhsa_group_segment_fixed_size 0
  .amdhsa_kernarg_size 48
  .amdhsa_user_sgpr_count 2
  .amdhsa_user_sgpr_kernarg_segment_ptr 1
  .amdhsa_system_sgpr_workgroup_id_x 1
.end_amdhsa_kernel
"""

if __name__ == "__main__":
    gen()
    for name in E.order:
        b = E.blocks[name]
        nb = []
        for l in b:
            if nb and l.endswith(" lds") and " m0," in nb[-1]:
                nb.append("s_nop 0")
            nb.append(l)
        E.blocks[name] = nb
    out = HEADER
    for name in E.order:
        out += f"; ---- {name}\n"
        for l in E.blocks[name]:
            out += ("" if l.endswith(":") else "    ") + l + "\n"
    out += FOOTER
    open(sys.argv[1], "w").write(out)
    import pickle
    pickle.dump((E.order, E.blocks), open("blocks.pkl", "wb"))
    n = sum(len(b) for b in E.blocks.values())
    print("instructions:", n, {k: len(v) for k, v in E.blocks.items()})
```

```python
import struct
import sys
import re

N0 = 18
N1 = 12
LK = 8
LV = 6
BAR_GAP = 28
BUDGET = 24
DMA_COST = 8
STAMP = 0
NODMA = 0
NOSM = 0
NOLDS = 0
FIXPTR = 0
BULK = 0
STAMP2 = 0
STAMPD = 0
CODEPF = 0
FINE = 0
QLDS = 1
EPLDS = 1
MF16 = 0
PBIG = 2
LATE = 0
DMA_TAILPG = 1
DMA_STRIDE = 2
PFD = 3
for a in sys.argv[2:]:
    k, v = a.split("=")
    globals()[k] = int(v)


def f2u(x):
    return struct.unpack("<I", struct.pack("<f", x))[0]


C_SCALE = 0.0625 * 1.4426950408889634
THR = 65536.0
NEGBIG = 0xF149F2CA

def S_(buf, b):
    return 32 * buf + 16 * b
P0 = 64
KF = 96
VF = 128
KA = 160
VA = 168
KD = 172
VD = 180
TMP = 184
V_L = 200
V_M = 201
V_NMC = 202
V_SA = 203
V_SB = 204
V_QREL = 207
V_THR = 208
V_NEG = 209
V_LANE = 210
V_T0 = 211
V_T1 = 212
V_T2 = 213
V_QOFF = 214
V_WSOFF = 215
V_ALPHA = 216
V_T3 = 217
V_THRC = 218
V_PF = 219
V_PFD = 220
V_OL = 225
V_OM = 226
V_FLAG = 227
V_FOT = 228
EP = 0

A_O = 0
A_Q = 128
A_Q2 = 192

S_C = 28
S_WB = 29
S_KN = 30
S_VN = 31
S_ENDA = 32
S_STARTB = 33
S_ENDB = 34
S_OOB = 35
S_CNT = 36
S_KEY0 = 37
S_NSEG = 38
S_ACT = 39
S_RET = 40
S_MK = 42
S_QB = 50
S_T0 = 51
S_N = 52
S_QB2 = 53
S_T02 = 54
S_N2 = 55
S_ACT2 = 56
S_TMP = 57
S_TMP2 = 58
S_PID = 59
S_WAVE = 60
S_TMP3 = 61
S_SOFF = 62
S_SHIFT = 63
S_PFK = 66
S_PFV = 67
S_FIRST = 68
S_PUB = 69
S_HAVE = 70
S_QS = 71


class Em:
    def __init__(self):
        self.blocks = {}
        self.order = []
        self.cur = None
        self.ldsq = []
        self.pend = None

    def block(self, name):
        self.cur = []
        self.blocks[name] = self.cur
        self.order.append(name)

    def e(self, s):
        self.cur.append(s)

    def label(self, l):
        self.cur.append(l + ":")

    def ds(self, text, dst):
        self.e(text)
        self.ldsq.append(set(dst))
        assert len(self.ldsq) <= 15, "too many outstanding LDS ops"

    def need(self, regs):
        regs = set(regs)
        last = -1
        for i, d in enumerate(self.ldsq):
            if d & regs:
                last = i
        if last >= 0:
            n = len(self.ldsq) - 1 - last
            self.e(f"s_waitcnt lgkmcnt({n})")
            self.ldsq = self.ldsq[last + 1:]
            return True
        return False

    def lds_drain(self):
        self.ldsq = []

    def lds_drain_keep(self):
        pass


E = Em()


def vr(a, n):
    return f"v[{a}:{a + n - 1}]"


def ar(a, n):
    return f"a[{a}:{a + n - 1}]"


def kfrag(i):
    return KF + 4 * (i % 8)


def vfrag(i):
    return VF + 4 * (i % 8)


def k_read(i, slot):
    b, s = divmod(i, 16)
    off = slot * 32768 + b * 16384 + (s // 8) * 256
    d = kfrag(i)
    E.ds(f"ds_read_b128 {vr(d, 4)}, v{KA + s % 8} offset:{off}", range(d, d + 4))


def v_read(i, slot, half):
    s, j = divmod(i, 8)
    off = slot * 32768 + s * 8192 + (j // 4) * 256 + half * 4096
    d = vfrag(i) + 2 * half
    E.ds(f"ds_read_b64_tr_b16 {vr(d, 2)}, v{VA + j % 4} offset:{off}", range(d, d + 2))


def qk_mfma(i, sbuf):
    b, s = divmod(i, 16)
    regs = list(range(kfrag(i), kfrag(i) + 4))
    if i % 2 == 0 and i + 1 < 32:
        regs += list(range(kfrag(i + 1), kfrag(i + 1) + 4))
    E.need(regs)
    D = vr(S_(sbuf, b), 16)
    C = D if s > 0 else "0"
    if MF16:
        for hh in range(2):
            D = vr(S_(sbuf, b) + 4 * hh, 4)
            C = D if s > 0 else "0"
            t = f"v_mfma_f32_16x16x32_bf16 {D}, {vr(kfrag(i), 4)}, {ar(A_Q + 4 * s, 4)}, {C}"
            if hh == 0:
                E.e(t)
            else:
                E.pend = t
        return
    E.e(f"v_mfma_f32_32x32x16_bf16 {D}, {vr(kfrag(i), 4)}, {ar(A_Q + 4 * s, 4)}, {C}")


def pv_mfma(i, pbuf):
    s, j = divmod(i, 8)
    regs = list(range(vfrag(i), vfrag(i) + 4))
    if i % 2 == 0 and i + 1 < 32:
        regs += list(range(vfrag(i + 1), vfrag(i + 1) + 4))
    E.need(regs)
    D = ar(A_O + 16 * j, 16)
    if MF16:
        for hh in range(2):
            D = ar(A_O + 16 * j + 4 * hh, 4)
            t = f"v_mfma_f32_16x16x32_bf16 {D}, {vr(vfrag(i), 4)}, {vr(P0 + 16 * pbuf + 4 * s, 4)}, {D}"
            if hh == 0:
                E.e(t)
            else:
                E.pend = t
        return
    E.e(f"v_mfma_f32_32x32x16_bf16 {D}, {vr(vfrag(i), 4)}, {vr(P0 + 16 * pbuf + 4 * s, 4)}, {D}")


def dma_ops(kslot, vslot, pf=True):
    ops = []

    def m0(val):
        return (4, lambda: E.e(f"s_add_u32 m0, s{S_WB}, {val}"))

    def ld(voff, srd, soff, imm):
        if NODMA and E.cur is not E.blocks.get("setup"):
            return (0, lambda: None)
        return (DMA_COST, lambda: E.e(f"buffer_load_dwordx4 v{voff}, s[{srd}:{srd + 3}], s{soff} offen offset:{imm} lds"))

    for g in range(2):
        ops.append(m0(65536 + vslot * 32768 + 4096 * g))
        for jj in range(4):
            ops.append(ld(VD + 2 * g + (jj % 2), 12, S_VN, 1024 * jj))
    for g in range(2):
        ops.append(m0(kslot * 32768 + 4096 * g))
        for jj in range(4):
            ops.append(ld(KD + 4 * g + jj, 8, S_KN, 1024 * jj))
    ops.append((4, lambda: E.e(f"s_mov_b32 s{S_VN}, s{S_KN}")))
    ops.append(upd(S_KN))
    if pf and PFD:
        ops += pf_ops()
    return ops


def upd(sp):
    def f():
        if FIXPTR:
            return
        E.e(f"s_add_u32 s{sp}, s{sp}, 0x8000")
        E.e(f"s_cmp_eq_u32 s{sp}, s{S_ENDA}")
        E.e(f"s_cselect_b32 s{sp}, s{S_STARTB}, s{sp}")
        E.e(f"s_cmp_eq_u32 s{sp}, s{S_ENDB}")
        E.e(f"s_cselect_b32 s{sp}, s{S_OOB}, s{sp}")
    return (20, f)


def pf_ops():
    return [(DMA_COST, lambda: E.e(f"buffer_load_dword v{V_PFD}, v{V_PF}, s[12:15], s{S_PFK} offen")),
            (DMA_COST, lambda: E.e(f"buffer_load_dword v{V_PFD + 1}, v{V_PF}, s[8:11], s{S_PFK} offen")),
            (4, lambda: E.e(f"s_add_u32 s{S_PFK}, s{S_PFK}, 0x8000"))]


def sm_stream(sbuf, pairs, first):
    ops = []
    n = len(pairs)
    st = {"first": first}

    def T(idx):
        return TMP + 2 * (idx % 4)

    def F(idx):
        k = pairs[idx]
        r = 32 * sbuf + 2 * k
        t = T(idx)
        ops.append((4, lambda: E.e(f"v_fma_f32 v{t}, v{r}, s{S_C}, v{V_NMC}")))
        ops.append((4, lambda: E.e(f"v_fma_f32 v{t + 1}, v{r + 1}, s{S_C}, v{V_NMC}")))

    def X(idx):
        t = T(idx)
        ops.append((8, lambda: E.e(f"v_exp_f32 v{t}, v{t}")))
        ops.append((8, lambda: E.e(f"v_exp_f32 v{t + 1}, v{t + 1}")))

    def A(idx):
        k = pairs[idx]
        t = T(idx)
        p = P0 + 16 * sbuf + k
        if st["first"]:
            st["first"] = False
            ops.append((4, lambda: E.e(f"v_mov_b32 v{V_SA}, v{t}")))
            ops.append((4, lambda: E.e(f"v_mov_b32 v{V_SB}, v{t + 1}")))
        else:
            ops.append((4, lambda: E.e(f"v_add_f32 v{V_SA}, v{V_SA}, v{t}")))
            ops.append((4, lambda: E.e(f"v_add_f32 v{V_SB}, v{V_SB}, v{t + 1}")))
        ops.append((4, lambda: E.e(f"v_cvt_pk_bf16_f32 v{p}, v{t}, v{t + 1}")))

    for i in range(n + 2):
        if i < n:
            F(i)
        if 1 <= i <= n:
            X(i - 1)
        if i >= 2:
            A(i - 2)
    if NOSM:
        return []
    return ops


def mask_ops(sbuf, b):
    ops = []
    for q in range(4):
        for r4 in range(4):
            r = 4 * q + r4
            o = 32 * b + 8 * q + r4
            ops.append((4, lambda o=o, r4=r4: E.e(f"v_cmp_lt_i32 s[{S_MK + 2 * r4}:{S_MK + 2 * r4 + 1}], v{V_THR}, {o}")))
        for r4 in range(4):
            r = 4 * q + r4
            reg = S_(sbuf, b) + r
            ops.append((4, lambda reg=reg, r4=r4: E.e(f"v_cndmask_b32 v{reg}, v{reg}, v{V_NEG}, s[{S_MK + 2 * r4}:{S_MK + 2 * r4 + 1}]")))
    return ops


def run_ops(ops):
    for c, f in ops:
        f()


def schedule(mf, fixed, stream, first_gap, last_gap):
    n = len(mf)
    free = []
    for g in range(n):
        c = sum(x[0] for x in fixed[g]) + 2
        free.append(max(0, BUDGET - c) if first_gap <= g <= last_gap else 0)
    T = sum(x[0] for x in stream)
    F = sum(free)
    scale = T / F if F > 0 else 0
    credit = 0.0
    si = 0
    for g in range(n):
        mf[g]()
        ops = list(fixed[g])
        if first_gap <= g <= last_gap:
            credit += free[g] * scale
            while si < len(stream) and (credit >= stream[si][0] * 0.5 or g == last_gap):
                credit -= stream[si][0]
                ops.append(stream[si])
                si += 1
        tot = sum(o[0] for o in ops)
        acc = 0
        for o in ops:
            if E.pend and acc >= tot / 2:
                E.e(E.pend); E.pend = None
            o[1]()
            acc += o[0]
        if E.pend:
            E.e(E.pend); E.pend = None
    assert si == len(stream)


_rare_sites = []


def check_and_accumulate(par, tag):
    E.e(f"v_add_f32 v{V_SA}, v{V_SA}, v{V_SB}")
    E.e(f"v_cmp_nle_f32 vcc, v{V_SA}, v{V_THRC}")
    E.e("s_nop 3")
    E.e(f"s_cbranch_vccz .Lok_{tag}")
    E.e(f"s_getpc_b64 s[{S_RET}:{S_RET + 1}]")
    E.e(f"s_branch .Lrare{par}")
    E.label(f".Lok_{tag}")
    E.e(f"v_add_f32 v{V_L}, v{V_L}, v{V_SA}")


def b_tail_fixed(fixed, kslot_next, dma):
    def bar():
        if STAMP2:
            E.e("s_waitcnt lgkmcnt(0)")
            E.e("s_memtime s[98:99]")
            E.e("s_waitcnt lgkmcnt(0)")
            E.e(f"v_cmp_eq_u32 vcc, s96, v{V_LANE}")
            E.e("v_mov_b32 v224, s98")
            E.e("s_nop 1")
            E.e("v_cndmask_b32 v222, v222, v224, vcc")
        E.e(f"s_waitcnt vmcnt({2 if PFD else 0}) lgkmcnt(0)")
        E.lds_drain()
        E.e("s_barrier")
        if STAMP2:
            E.e("s_memtime s[98:99]")
            E.e("s_waitcnt lgkmcnt(0)")
            E.e("v_mov_b32 v224, s98")
            E.e("v_cndmask_b32 v223, v223, v224, vcc")
            E.e("s_add_u32 s96, s96, 1")
    fixed[BAR_GAP].append((8, bar))
    ng = 32 - BAR_GAP
    idx = 0
    per = (LK + ng - 1) // ng
    for g in range(BAR_GAP, 32):
        for _ in range(per):
            if idx < LK:
                fixed[g].append((4, lambda i=idx: k_read(i, kslot_next)))
                idx += 1
    nd = 0
    for g in range(BAR_GAP, 32):
        for _ in range(DMA_TAILPG):
            if dma:
                fixed[g].append(dma.pop(0))
    return dma


NDMA_TAIL = DMA_TAILPG * (32 - BAR_GAP)


def phase_a(par, dma_rest, with_mfma=True, tag=""):
    nb = 1 - par
    mf = []
    fixed = [[] for _ in range(32)]
    for i in range(32):
        if with_mfma:
            mf.append(lambda i=i: qk_mfma(i, nb))
            if i + LK < 32:
                fixed[i].append((4, lambda i=i: k_read(i + LK, nb)))
        else:
            mf.append(lambda: None)
    g = 0
    for op in dma_rest:
        fixed[g].append(op)
        g += DMA_STRIDE if op[0] > 4 else 0
        g = min(g, 31)
    g0 = 32 - LV
    for k in range(LV):
        fixed[g0 + k - 1].append((4, lambda k=k: v_read(k, par, 0)))
        fixed[g0 + k - 1].append((4, lambda k=k: v_read(k, par, 1)))
    stream = sm_stream(par, list(range(N1 // 2, 16)), first=(N1 == 0))
    schedule(mf, fixed, stream, 0, 29)
    check_and_accumulate(par, tag)


def phase_b(par, masked, last):
    nb = 1 - par
    mf = [lambda i=i: pv_mfma(i, par) for i in range(32)]
    fixed = [[] for _ in range(32)]
    for i in range(32):
        if i + LV < 32:
            fixed[i].append((4, lambda i=i: v_read(i + LV, par, 0)))
            fixed[i].append((4, lambda i=i: v_read(i + LV, par, 1)))
    stream = []
    dma = []
    if not last:
        if masked:
            stream += mask_ops(nb, 0)
        stream += sm_stream(nb, list(range(0, N1 // 2)), first=True)
        if masked:
            stream += mask_ops(nb, 1)
        dma = dma_ops(nb, par)
        dma = b_tail_fixed(fixed, par, dma)
    schedule(mf, fixed, stream, 1 if not masked else 1, BAR_GAP - 1)
    return dma


def set_thr(off_tiles_from_end):
    E.e(f"s_add_u32 s{S_TMP}, s{S_T0}, s{S_N}")
    E.e(f"s_sub_u32 s{S_TMP}, s{S_TMP}, {off_tiles_from_end}")
    E.e(f"s_lshl_b32 s{S_TMP}, s{S_TMP}, 6")
    E.e(f"v_subrev_u32 v{V_THR}, s{S_TMP}, v{V_QREL}")


def iteration(par, masked, tag, dma_in):
    phase_a(par, dma_in, True, tag)
    return phase_b(par, masked, False)


def tile_max(sbuf, dst, t1):
    base = 32 * sbuf
    E.e(f"v_max3_f32 v{dst}, v{base}, v{base + 1}, v{base + 2}")
    E.e(f"v_max3_f32 v{t1}, v{base + 3}, v{base + 4}, v{base + 5}")
    r = 6
    acc = [dst, t1]
    k = 0
    while r + 1 < 32:
        E.e(f"v_max3_f32 v{acc[k]}, v{acc[k]}, v{base + r}, v{base + r + 1}")
        k ^= 1
        r += 2
    E.e(f"v_max_f32 v{dst}, v{dst}, v{t1}")
    E.e(f"v_mov_b32 v{t1}, v{dst}")
    E.e("s_nop 1")
    E.e(f"v_permlane32_swap_b32 v{dst}, v{t1}")
    E.e(f"v_max_f32 v{dst}, v{dst}, v{t1}")


def flag_addr():
    E.e(f"s_lshl_b32 s{S_TMP}, s{S_PID}, 2")
    E.e(f"s_add_u32 s{S_TMP}, s{S_TMP}, s{S_WAVE}")
    E.e(f"s_and_b32 s{S_SHIFT}, s{S_TMP}, 31")
    E.e(f"s_lshr_b32 s{S_TMP}, s{S_TMP}, 5")
    E.e(f"s_lshl_b32 s{S_TMP}, s{S_TMP}, 2")
    E.e(f"s_add_u32 s{S_TMP}, s{S_TMP}, 64")
    E.e(f"v_mov_b32 v{V_T2}, s{S_TMP}")
    E.e(f"s_lshl_b32 s{S_TMP2}, 1, s{S_SHIFT}")
    E.e(f"v_mov_b32 v{V_T3}, s{S_TMP2}")


def flag_test():
    E.e(f"v_readfirstlane_b32 s{S_TMP3}, v{V_FLAG}")
    E.e("s_nop 3")
    E.e(f"s_lshr_b32 s{S_TMP3}, s{S_TMP3}, s{S_SHIFT}")
    E.e(f"s_and_b32 s{S_TMP3}, s{S_TMP3}, 1")
    E.e(f"s_cmp_lg_u32 s{S_TMP3}, 0")


def partner_loads():
    E.e(f"s_mov_b32 s{S_SOFF}, 0")
    for g in range(16):
        E.e(f"buffer_load_dwordx4 {ar(A_Q2 + 4 * g, 4)}, v{V_WSOFF}, s[20:23], s{S_SOFF} offen offset:{1024 * (g % 4)} sc1")
        if g % 4 == 3:
            E.e(f"s_add_u32 s{S_SOFF}, s{S_SOFF}, 0x1000")
    E.e(f"buffer_load_dword v{V_OL}, v{V_WSOFF}, s[20:23], s{S_SOFF} offen sc1")
    E.e(f"buffer_load_dword v{V_OM}, v{V_WSOFF}, s[20:23], s{S_SOFF} offen offset:4 sc1")


def store_epilogue(partner):
    WA = 96
    RA = 104
    GO = 108
    RB = 112
    if EPLDS:
        L = V_LANE
        E.e(f"s_add_u32 s{S_TMP}, s{S_WB}, 0x20000")
        E.e(f"v_and_b32 v{V_T0}, 31, v{L}")
        E.e(f"v_lshrrev_b32 v{V_T1}, 5, v{L}")
        E.e(f"v_and_b32 v{V_T2}, 15, v{L}")
        E.e(f"v_xor_b32 v{V_T2}, v{V_T2}, v{V_T1}")
        E.e(f"v_lshl_add_u32 v{V_T0}, v{V_T0}, 8, s{S_TMP}")
        for k in range(8):
            E.e(f"v_xor_b32 v{WA + k}, {2 * k}, v{V_T2}")
            E.e(f"v_lshl_add_u32 v{WA + k}, v{WA + k}, 4, v{V_T0}")
        E.e(f"v_lshrrev_b32 v{V_T1}, 4, v{L}")
        E.e(f"v_and_b32 v{V_T2}, 15, v{L}")
        for i in range(4):
            E.e(f"v_add_u32 v{RA + i}, {4 * i}, v{V_T1}")
            E.e(f"v_xor_b32 v{V_T3}, v{RA + i}, v{V_T2}")
            E.e(f"v_lshlrev_b32 v{V_T3}, 4, v{V_T3}")
            E.e(f"v_lshl_add_u32 v{RA + i}, v{RA + i}, 8, v{V_T3}")
            E.e(f"v_add_u32 v{RA + i}, s{S_TMP}, v{RA + i}")
        E.e(f"s_lshl_b32 s{S_TMP2}, s{S_WAVE}, 14")
        E.e(f"v_lshlrev_b32 v{GO}, 9, v{V_T1}")
        E.e(f"v_lshl_add_u32 v{GO}, v{V_T2}, 4, v{GO}")
        E.e(f"v_add_u32 v{GO}, s{S_TMP2}, v{GO}")
    for j in range(8):
        x = EP + 32 * (j % 2)
        for r_ in range(16):
            E.e(f"v_accvgpr_read_b32 v{x + r_}, a{A_O + 16 * j + r_}")
        if partner:
            for k in range(8):
                E.e(f"v_accvgpr_read_b32 v{x + 16 + k}, a{A_Q2 + 8 * j + k}")
        for r_ in range(16):
            E.e(f"v_mul_f32 v{x + r_}, v{x + r_}, v{V_ALPHA}")
        if partner:
            for k in range(8):
                E.e(f"v_lshlrev_b32 v{TMP + k}, 16, v{x + 16 + k}")
                E.e(f"v_and_b32 v{TMP + 8 + k}, 0xffff0000, v{x + 16 + k}")
            for k in range(8):
                E.e(f"v_fma_f32 v{x + 2 * k}, v{TMP + k}, v{V_FOT}, v{x + 2 * k}")
                E.e(f"v_fma_f32 v{x + 2 * k + 1}, v{TMP + 8 + k}, v{V_FOT}, v{x + 2 * k + 1}")
        for k in range(8):
            E.e(f"v_cvt_pk_bf16_f32 v{x + 16 + k}, v{x + 2 * k}, v{x + 2 * k + 1}")
        E.e("s_nop 1")
        for gp in range(2):
            y = x + 16 + 4 * gp
            E.e(f"v_permlane32_swap_b32 v{y}, v{y + 2}")
            E.e(f"v_permlane32_swap_b32 v{y + 1}, v{y + 3}")
        for gp in range(2):
            y = x + 16 + 4 * gp
            if EPLDS:
                E.e(f"ds_write_b128 v{WA + 2 * (j % 4) + gp}, {vr(y, 4)}")
            else:
                E.e(f"buffer_store_dwordx4 {vr(y, 4)}, v{V_QOFF}, s[16:19], s{S_QB} offen offset:{64 * j + 32 * gp}")
        if EPLDS and j % 4 == 3:
            hh = j // 4
            for i in range(8):
                E.e(f"ds_read_b128 {vr(RB + 4 * i, 4)}, v{RA + i % 4} offset:{4096 * (i // 4)}")
            E.e(f"s_mov_b32 s{S_SOFF}, s{S_QB}")
            for i in range(8):
                E.e(f"s_waitcnt lgkmcnt({7 - i})")
                E.e(f"buffer_store_dwordx4 {vr(RB + 4 * i, 4)}, v{GO}, s[16:19], s{S_SOFF} offen offset:{256 * hh} sc0 sc1")
                if i < 7:
                    E.e(f"s_add_u32 s{S_SOFF}, s{S_SOFF}, 0x800")


def stamp(i, real=False):
    if not STAMP:
        return
    assert not E.ldsq or True
    E.e("s_memrealtime s[98:99]" if real else "s_memtime s[98:99]")
    E.e("s_waitcnt lgkmcnt(0)")
    E.lds_drain_keep()
    E.e(f"s_mov_b32 s{86 + i}, s98")


def gen():
    E.block("setup")
    E.e("s_cmp_ge_u32 s2, 256")
    E.e("s_cbranch_scc1 .Lend")
    stamp(0)
    stamp(1, True)
    if STAMP2:
        E.e("s_mov_b32 s96, 0")
        E.e("v_mov_b32 v222, 0")
        E.e("v_mov_b32 v223, 0")
    E.e("s_load_dwordx4 s[4:7], s[0:1], 0")
    E.e("s_load_dwordx4 s[8:11], s[0:1], 16")
    E.e("s_load_dwordx4 s[12:15], s[0:1], 32")
    E.e(f"v_lshrrev_b32 v{V_T0}, 6, v0")
    E.e(f"v_and_b32 v{V_LANE}, 63, v0")
    E.e("s_nop 0")
    E.e(f"v_readfirstlane_b32 s{S_WAVE}, v{V_T0}")
    E.e("s_and_b32 s64, s2, 7")
    E.e("s_lshr_b32 s65, s2, 3")
    E.e("s_and_b32 s66, s65, 1")
    E.e("s_lshl_b32 s64, s64, 1")
    E.e("s_add_u32 s64, s64, s66")
    E.e("s_lshr_b32 s65, s65, 1")
    E.e("s_and_b32 s67, s65, 1")
    E.e("s_lshl_b32 s85, s65, 16")
    E.e("s_mov_b32 s97, s85")
    E.e("s_lshr_b32 s65, s65, 1")
    E.e(f"s_lshl_b32 s{S_PID}, s64, 3")
    E.e(f"s_add_u32 s{S_PID}, s{S_PID}, s65")
    E.e("s_lshl_b32 s68, s64, 20")
    E.e("s_waitcnt lgkmcnt(0)")
    if FINE == 2:
        stamp(6)
    E.e("s_mov_b32 s70, s6"); E.e("s_mov_b32 s71, s7")
    E.e("s_mov_b32 s72, s8"); E.e("s_mov_b32 s73, s9")
    E.e("s_mov_b32 s74, s10"); E.e("s_mov_b32 s75, s11")
    E.e("s_mov_b32 s76, s12"); E.e("s_mov_b32 s77, s13")
    E.e("s_mov_b32 s78, s14"); E.e("s_mov_b32 s79, s15")
    for (srd, lo, hi) in ((4, 4, 5), (8, 70, 71), (12, 72, 73), (16, 74, 75)):
        E.e(f"s_add_u32 s{srd}, s{lo}, s68")
        E.e(f"s_addc_u32 s{srd + 1}, s{hi}, 0")
        E.e(f"s_and_b32 s{srd + 1}, s{srd + 1}, 0xffff")
        E.e(f"s_mov_b32 s{srd + 2}, 0x100000")
        E.e(f"s_mov_b32 s{srd + 3}, 0x00020000")
    E.e("s_mov_b32 s20, s78"); E.e("s_and_b32 s21, s79, 0xffff")
    E.e("s_mov_b32 s22, 0x10000000"); E.e("s_mov_b32 s23, 0x00020000")
    E.e("s_mov_b32 s24, s76"); E.e("s_and_b32 s25, s77, 0xffff")
    E.e("s_mov_b32 s26, 256"); E.e("s_mov_b32 s27, 0x00020000")
    E.e(f"s_mov_b32 s{S_C}, {f2u(C_SCALE):#x}")
    E.e(f"s_lshl_b32 s{S_WB}, s{S_WAVE}, 13")
    E.e(f"s_mov_b32 s{S_OOB}, 0x40000000")
    E.e("s_lshl_b32 s69, s65, 1")
    E.e("s_sub_u32 s80, 32, s69")
    E.e("s_add_u32 s81, s69, 2")
    E.e("s_sub_u32 s82, 15, s65")
    E.e("s_lshl_b32 s82, s82, 16")
    E.e("s_lshl_b32 s83, s65, 16")
    E.e(f"s_cmp_lt_u32 s65, {PBIG}")
    E.e(f"s_cselect_b32 s84, {N0 + 2}, {N0}")
    E.e(f"s_min_u32 s84, s80, s84")
    E.e("s_sub_u32 s85, s80, s84")
    E.e("s_cmp_eq_u32 s67, 0")
    E.e("s_cbranch_scc0 .Lwg1")
    E.e(f"s_mov_b32 s{S_QB}, s82")
    E.e(f"s_mov_b32 s{S_T0}, 0")
    E.e(f"s_mov_b32 s{S_N}, s84")
    E.e(f"s_mov_b32 s{S_NSEG}, 1")
    E.e(f"s_cmp_lg_u32 s85, 0")
    E.e(f"s_cselect_b32 s{S_ACT}, 1, 0")
    E.e(f"s_mov_b32 s{S_ENDA}, 1")
    E.e(f"s_mov_b32 s{S_STARTB}, 1")
    E.e(f"s_lshl_b32 s{S_ENDB}, s84, 15")
    E.e("s_branch .Lsegdone")
    E.label(".Lwg1")
    E.e(f"s_cmp_lg_u32 s85, 0")
    E.e(f"s_cselect_b32 s{S_NSEG}, 2, 1")
    E.e(f"s_cbranch_scc0 .Lwg1_single")
    E.e(f"s_mov_b32 s{S_QB}, s82")
    E.e(f"s_mov_b32 s{S_T0}, s84")
    E.e(f"s_mov_b32 s{S_N}, s85")
    E.e(f"s_mov_b32 s{S_ACT}, 2")
    E.e(f"s_mov_b32 s{S_QB2}, s83")
    E.e(f"s_mov_b32 s{S_T02}, 0")
    E.e(f"s_mov_b32 s{S_N2}, s81")
    E.e(f"s_mov_b32 s{S_ACT2}, 0")
    E.e(f"s_lshl_b32 s{S_ENDA}, s80, 15")
    E.e(f"s_mov_b32 s{S_STARTB}, 0")
    E.e(f"s_lshl_b32 s{S_ENDB}, s81, 15")
    E.e("s_branch .Lsegdone")
    E.label(".Lwg1_single")
    E.e(f"s_mov_b32 s{S_QB}, s83")
    E.e(f"s_mov_b32 s{S_T0}, 0")
    E.e(f"s_mov_b32 s{S_N}, s81")
    E.e(f"s_mov_b32 s{S_ACT}, 0")
    E.e(f"s_mov_b32 s{S_ENDA}, 1")
    E.e(f"s_mov_b32 s{S_STARTB}, 1")
    E.e(f"s_lshl_b32 s{S_ENDB}, s81, 15")
    E.label(".Lsegdone")
    L = V_LANE
    E.e(f"v_and_b32 v{V_T0}, 31, v{L}")
    E.e(f"v_lshrrev_b32 v{V_T1}, 5, v{L}")
    E.e(f"s_lshl_b32 s{S_TMP}, s{S_WAVE}, 5")
    E.e(f"v_add_u32 v{V_T2}, s{S_TMP}, v{V_T0}")
    E.e(f"v_lshlrev_b32 v{V_QOFF}, 9, v{V_T2}")
    E.e(f"v_lshl_add_u32 v{V_QOFF}, v{V_T1}, 4, v{V_QOFF}")
    E.e(f"v_and_b32 v{V_T3}, 15, v{L}")
    for j in range(8):
        E.e(f"v_add_u32 v{KA + j}, {2 * j}, v{V_T1}")
        E.e(f"v_xor_b32 v{KA + j}, v{KA + j}, v{V_T3}")
        E.e(f"v_lshlrev_b32 v{KA + j}, 4, v{KA + j}")
        E.e(f"v_lshl_add_u32 v{KA + j}, v{V_T0}, 9, v{KA + j}")
    E.e(f"v_bfe_u32 v{TMP}, v{L}, 2, 2")
    E.e(f"v_and_b32 v{TMP + 1}, 3, v{L}")
    E.e(f"v_bfe_u32 v{TMP + 2}, v{L}, 4, 1")
    E.e(f"v_lshl_add_u32 v{TMP + 3}, v{V_T1}, 2, v{TMP}")
    E.e(f"v_lshlrev_b32 v{TMP + 3}, 9, v{TMP + 3}")
    E.e(f"v_lshl_add_u32 v{TMP + 3}, v{TMP + 2}, 5, v{TMP + 3}")
    E.e(f"v_lshl_add_u32 v{TMP + 3}, v{TMP + 1}, 3, v{TMP + 3}")
    E.e(f"v_add_u32 v{TMP + 3}, 0x10000, v{TMP + 3}")
    for i in range(4):
        E.e(f"v_xor_b32 v{VA + i}, {i}, v{TMP}")
        E.e(f"v_lshl_add_u32 v{VA + i}, v{VA + i}, 6, v{TMP + 3}")
    E.e(f"v_lshl_add_u32 v{TMP + 4}, v{V_T1}, 9, s{S_WB}")
    for j in range(8):
        E.e(f"v_add_u32 v{KD + j}, {2 * j % 16}, v{V_T1}")
        E.e(f"v_xor_b32 v{KD + j}, v{KD + j}, v{V_T0}")
        E.e(f"v_lshl_add_u32 v{KD + j}, v{KD + j}, 4, v{TMP + 4}")
        if j >= 4:
            E.e(f"v_add_u32 v{KD + j}, 0x1000, v{KD + j}")
    for g in range(2):
        for o in range(2):
            d = VD + 2 * g + o
            E.e(f"v_add_u32 v{d}, {2 * o}, v{V_T1}")
            E.e(f"v_lshlrev_b32 v{d}, 2, v{d}")
            E.e(f"v_xor_b32 v{d}, v{d}, v{V_T0}")
            E.e(f"v_lshl_add_u32 v{d}, v{d}, 4, v{TMP + 4}")
            if g:
                E.e(f"v_add_u32 v{d}, 0x1000, v{d}")
    E.e(f"v_mov_b32 v{V_NEG}, {NEGBIG:#x}")
    E.e(f"v_mov_b32 v{V_THRC}, {f2u(THR):#x}")
    E.e(f"s_mul_i32 s{S_TMP}, s{S_WAVE}, 0x9000")
    E.e(f"s_lshl_b32 s{S_TMP2}, s{S_PID}, 18")
    E.e(f"s_add_u32 s{S_TMP}, s{S_TMP}, s{S_TMP2}")
    E.e(f"v_lshl_add_u32 v{V_WSOFF}, v{L}, 4, s{S_TMP}")
    E.e(f"v_and_b32 v{V_PF}, 7, v{L}")
    E.e(f"s_lshl_b32 s{S_TMP}, s65, 12")
    E.e(f"s_lshl_b32 s{S_TMP2}, s{S_WAVE}, 10")
    E.e(f"s_add_u32 s{S_TMP}, s{S_TMP}, s{S_TMP2}")
    E.e(f"v_lshl_add_u32 v{V_PF}, v{V_PF}, 7, s{S_TMP}")
    E.e(f"s_lshl_b32 s{S_KN}, s{S_T0}, 15")
    E.e(f"s_mov_b32 s{S_VN}, s{S_KN}")
    E.e(f"s_mov_b32 s{S_FIRST}, 1")
    E.e(f"s_mov_b32 s{S_PUB}, 0")
    E.e(f"s_mov_b32 s{S_HAVE}, 0")
    if CODEPF:
        E.e("s_getpc_b64 s[90:91]")
        E.label(".Lpc0")
        E.e(f"v_lshlrev_b32 v{TMP}, 7, v{L}")
        E.e(f"v_mov_b32 v{TMP + 1}, 0")
        E.e(f"v_add_co_u32 v{TMP}, vcc, s90, v{TMP}")
        E.e("s_nop 1")
        E.e(f"v_mov_b32 v{TMP + 2}, s91")
        E.e(f"v_addc_co_u32 v{TMP + 1}, vcc, v{TMP + 2}, v{TMP + 1}, vcc")
        for k in range(CODEPF):
            E.e(f"global_load_dword v{V_PFD}, v[{TMP}:{TMP + 1}], off")
            E.e(f"v_add_co_u32 v{TMP}, vcc, 0x2000, v{TMP}")
            E.e("s_nop 1")
            E.e(f"v_addc_co_u32 v{TMP + 1}, vcc, 0, v{TMP + 1}, vcc")
    if FINE == 2:
        stamp(7)
    if QLDS:
        E.e(f"s_lshl_b32 s{S_TMP}, s{S_WAVE}, 14")
        E.e(f"s_cmp_lt_u32 s{S_WAVE}, 2")
        E.e(f"s_cselect_b32 s{S_TMP2}, 2, 1")
        E.e(f"s_lshl_b32 s{S_TMP2}, s{S_TMP2}, 16")
        E.e(f"s_add_u32 s{S_QS}, s{S_TMP}, s{S_TMP2}")
        E.e(f"s_add_u32 s{S_TMP}, s{S_QB}, s{S_WB}")
        for hf in range(2):
            for g in range(2):
                E.e(f"s_add_u32 m0, s{S_QS}, {8192 * hf + 4096 * g}")
                E.e("s_nop 0")
                for jj in range(4):
                    E.e(f"buffer_load_dwordx4 v{KD + 4 * g + jj}, s[4:7], s{S_TMP} offen offset:{1024 * jj} lds")
            if hf == 0:
                E.e(f"s_add_u32 s{S_TMP}, s{S_TMP}, 0x2000")
    else:
        for s_ in range(16):
            E.e(f"buffer_load_dwordx4 {ar(A_Q + 4 * s_, 4)}, v{V_QOFF}, s[4:7], s{S_QB} offen offset:{32 * s_}")
    if FINE == 2:
        stamp(8)
    d0 = dma_ops(0, 0, pf=False)
    run_ops(d0[10:])
    if FINE == 2:
        stamp(9)
    def later():
        run_ops(d0[:10])
        d1 = dma_ops(1, 1, pf=False)[10:]
        run_ops(d1)
        if PFD:
            E.e(f"s_mul_i32 s{S_PFK}, s67, {N0 * 32768}")
            E.e(f"s_add_u32 s{S_PFK}, s{S_PFK}, 0x8000")
            for _ in range(PFD):
                run_ops(pf_ops())
    nyoung = 0
    if not LATE:
        later()
        nyoung = 16 + 2 * PFD
    if STAMP and FINE == 1:
        stamp(6)
        E.e(f"s_waitcnt vmcnt({nyoung + 8 + 15})")
        stamp(7)
        E.e(f"s_waitcnt vmcnt({nyoung + 8})")
        stamp(8)
        E.e(f"s_waitcnt vmcnt({nyoung})")
        stamp(9)
    E.e(f"s_waitcnt vmcnt({nyoung})")
    E.e("s_barrier")
    if LATE:
        later()
    if QLDS:
        for j in range(8):
            E.e(f"v_add_u32 v{TMP + j}, s{S_QS}, v{KA + j}")
        for s_ in range(16):
            E.e(f"ds_read_b128 {ar(A_Q + 4 * s_, 4)}, v{TMP + s_ % 8} offset:{256 * (s_ // 8)}")
            if s_ == 7:
                E.e("s_waitcnt lgkmcnt(0)")
        E.e("s_waitcnt lgkmcnt(0)")

    E.block("prologue")
    E.label(".Lseg")
    E.e(f"s_lshr_b32 s{S_TMP}, s{S_QB}, 9")
    E.e(f"v_lshrrev_b32 v{V_T0}, 9, v{V_QOFF}")
    E.e(f"v_add_u32 v{V_QREL}, s{S_TMP}, v{V_T0}")
    E.e(f"v_lshrrev_b32 v{V_T1}, 5, v{V_LANE}")
    E.e(f"v_lshlrev_b32 v{V_T1}, 2, v{V_T1}")
    E.e(f"v_sub_u32 v{V_QREL}, v{V_QREL}, v{V_T1}")
    for i in range(128):
        E.e(f"v_accvgpr_write_b32 a{A_O + i}, 0")
    E.e(f"v_mov_b32 v{V_L}, 0")
    stamp(2)
    for i in range(LK):
        k_read(i, 0)
    for i in range(32):
        qk_mfma(i, 0)
        if E.pend:
            E.e(E.pend); E.pend = None
        if i + LK < 32:
            k_read(i + LK, 0)
    E.e(f"s_lshl_b32 s{S_TMP}, s{S_T0}, 6")
    E.e(f"v_subrev_u32 v{V_THR}, s{S_TMP}, v{V_QREL}")
    E.e("s_nop 7")
    E.e("s_nop 3")
    run_ops(mask_ops(0, 0))
    run_ops(mask_ops(0, 1))
    tile_max(0, V_M, V_T0)
    E.e(f"v_mul_f32 v{V_NMC}, s{S_C}, v{V_M}")
    E.e(f"v_sub_f32 v{V_NMC}, 0, v{V_NMC}")
    run_ops(sm_stream(0, list(range(0, N1 // 2)), first=True))
    E.e(f"s_cmp_eq_u32 s{S_FIRST}, 1")
    E.e("s_cbranch_scc1 .Lpro1")
    E.e("s_waitcnt vmcnt(0)")
    E.e(f"s_cmp_eq_u32 s{S_PUB}, 1")
    E.e("s_cbranch_scc0 .Lpro1")
    flag_addr()
    E.e("s_mov_b64 exec, 1")
    E.e(f"buffer_atomic_or v{V_T3}, v{V_T2}, s[24:27], 0 offen sc1")
    E.e("s_mov_b64 exec, -1")
    E.label(".Lpro1")
    E.e(f"s_waitcnt vmcnt({2 * PFD + 4 * BULK}) lgkmcnt(0)")
    E.lds_drain()
    E.e("s_barrier")
    stamp(3)
    E.e(f"s_cmp_eq_u32 s{S_NSEG}, 2")
    E.e("s_cbranch_scc0 .Lpro2")
    for s_ in range(16):
        E.e(f"buffer_load_dwordx4 {ar(A_Q2 + 4 * s_, 4)}, v{V_QOFF}, s[4:7], s{S_QB2} offen offset:{32 * s_}")
    E.label(".Lpro2")
    for i in range(LK):
        k_read(i, 1)
    dma = dma_ops(0, 1)
    run_ops(dma[:NDMA_TAIL])
    dma_rest_even = dma[NDMA_TAIL:]
    entry_q = list(E.ldsq)
    E.e(f"s_cmp_eq_u32 s{S_N}, 2")
    E.e("s_cbranch_scc1 .Lt0m")
    E.e(f"s_sub_u32 s{S_CNT}, s{S_N}, 2")
    E.e(f"s_lshr_b32 s{S_CNT}, s{S_CNT}, 1")

    E.block("iter0")
    E.label(".Lloop")
    r = iteration(0, False, "i0", dma_ops(0, 1)[NDMA_TAIL:])
    assert list(E.ldsq) == entry_q
    E.e(f"s_sub_u32 s{S_CNT}, s{S_CNT}, 1")
    E.e(f"s_cmp_eq_u32 s{S_CNT}, 0")
    E.e("s_cbranch_scc1 .Lt1m_pre")
    E.block("iter1")
    iteration(1, False, "i1", dma_ops(1, 0)[NDMA_TAIL:])
    assert list(E.ldsq) == entry_q
    E.e("s_branch .Lloop")
    E.block("iter1m")
    E.label(".Lt1m_pre")
    E.e(f"s_cmp_eq_u32 s{S_ACT}, 1")
    E.e("s_cbranch_scc0 .Lt1m_nf")
    flag_addr()
    E.e(f"buffer_load_dword v{V_FLAG}, v{V_T2}, s[24:27], 0 offen sc0 sc1")
    E.label(".Lt1m_nf")
    set_thr(2)
    iteration(1, True, "i1m", dma_ops(1, 0)[NDMA_TAIL:])
    assert list(E.ldsq) == entry_q
    E.block("iter0m")
    E.e(f"s_cmp_eq_u32 s{S_ACT}, 1")
    E.e("s_cbranch_scc0 .Lt0m")
    flag_test()
    E.e("s_cbranch_scc0 .Lt0m_again")
    partner_loads()
    E.e(f"s_mov_b32 s{S_HAVE}, 1")
    E.e("s_branch .Lt0m")
    E.label(".Lt0m_again")
    E.e(f"buffer_load_dword v{V_FLAG}, v{V_T2}, s[24:27], 0 offen sc0 sc1")
    E.label(".Lt0m")
    set_thr(1)
    iteration(0, True, "i0m", dma_ops(0, 1)[NDMA_TAIL:])
    assert list(E.ldsq) == entry_q
    E.block("final1")
    E.e(f"s_cmp_eq_u32 s{S_ACT}, 1")
    E.e("s_cbranch_scc0 .Lf1")
    E.e(f"s_cmp_eq_u32 s{S_HAVE}, 1")
    E.e("s_cbranch_scc1 .Lf1")
    flag_test()
    E.e("s_cbranch_scc0 .Lf1")
    partner_loads()
    E.e(f"s_mov_b32 s{S_HAVE}, 1")
    E.label(".Lf1")
    E.e("s_waitcnt lgkmcnt(0)")
    E.lds_drain()
    phase_a(1, dma_ops(1, 0)[NDMA_TAIL:], with_mfma=False, tag="f1")
    phase_b(1, False, True)
    E.e("s_waitcnt lgkmcnt(0)")
    E.lds_drain()

    E.block("epilogue")
    stamp(4)
    E.e(f"v_mov_b32 v{V_T0}, v{V_L}")
    E.e("s_nop 1")
    E.e(f"v_permlane32_swap_b32 v{V_L}, v{V_T0}")
    E.e(f"v_add_f32 v{V_L}, v{V_L}, v{V_T0}")
    E.e(f"s_cmp_eq_u32 s{S_ACT}, 1")
    E.e("s_cbranch_scc1 .Lcombine")
    E.e(f"s_cmp_eq_u32 s{S_ACT}, 2")
    E.e("s_cbranch_scc1 .Lpublish")
    E.label(".Lstore")
    E.e(f"v_rcp_f32 v{V_ALPHA}, v{V_L}")
    E.e("s_nop 7")
    E.e("s_nop 3")
    store_epilogue(False)
    stamp(5)
    E.e(f"s_cmp_eq_u32 s{S_NSEG}, 2")
    E.e("s_cbranch_scc0 .Lfin")
    if STAMP:
        for i in range(4):
            E.e(f"s_mov_b32 s{86 + 6 + i}, s{86 + 2 + i}")
    E.label(".Lswitch")
    E.e(f"s_mov_b32 s{S_FIRST}, 0")
    E.e(f"s_mov_b32 s{S_NSEG}, 1")
    E.e(f"s_mov_b32 s{S_QB}, s{S_QB2}")
    E.e(f"s_mov_b32 s{S_T0}, s{S_T02}")
    E.e(f"s_mov_b32 s{S_N}, s{S_N2}")
    E.e(f"s_mov_b32 s{S_ACT}, s{S_ACT2}")
    for i in range(64):
        E.e(f"v_accvgpr_mov_b32 a{A_Q + i}, a{A_Q2 + i}")
    E.e("s_branch .Lseg")

    E.block("combine")
    E.label(".Lpublish")
    E.e("s_nop 7")
    E.e("s_nop 3")
    E.e(f"s_mov_b32 s{S_SOFF}, 0")
    for j in range(8):
        x = EP + 32 * (j % 2)
        for r_ in range(16):
            E.e(f"v_accvgpr_read_b32 v{x + r_}, a{A_O + 16 * j + r_}")
        for k in range(8):
            E.e(f"v_cvt_pk_bf16_f32 v{x + 16 + k}, v{x + 2 * k}, v{x + 2 * k + 1}")
        for gp in range(2):
            g = 2 * j + gp
            E.e(f"buffer_store_dwordx4 {vr(x + 16 + 4 * gp, 4)}, v{V_WSOFF}, s[20:23], s{S_SOFF} offen offset:{1024 * (g % 4)} sc1")
        if j % 2 == 1:
            E.e(f"s_add_u32 s{S_SOFF}, s{S_SOFF}, 0x1000")
    E.e(f"buffer_store_dword v{V_L}, v{V_WSOFF}, s[20:23], s{S_SOFF} offen sc1")
    E.e(f"buffer_store_dword v{V_M}, v{V_WSOFF}, s[20:23], s{S_SOFF} offen offset:4 sc1")
    E.e(f"s_mov_b32 s{S_PUB}, 1")
    if STAMP:
        stamp(5)
        for i in range(4):
            E.e(f"s_mov_b32 s{86 + 6 + i}, s{86 + 2 + i}")
    E.e("s_branch .Lswitch")
    E.label(".Lcombine")
    E.e(f"s_cmp_eq_u32 s{S_HAVE}, 1")
    E.e("s_cbranch_scc1 .Lready")
    flag_addr()
    E.label(".Lpoll")
    E.e(f"buffer_load_dword v{V_FLAG}, v{V_T2}, s[24:27], 0 offen sc0 sc1")
    E.e("s_waitcnt vmcnt(0)")
    flag_test()
    E.e("s_cbranch_scc1 .Lpolldone")
    E.e("s_sleep 8")
    E.e("s_branch .Lpoll")
    E.label(".Lpolldone")
    partner_loads()
    E.label(".Lready")
    E.e("s_waitcnt vmcnt(0)")
    E.e(f"v_max_f32 v{V_T2}, v{V_M}, v{V_OM}")
    E.e(f"v_sub_f32 v{V_T3}, v{V_M}, v{V_T2}")
    E.e(f"v_sub_f32 v{V_T1}, v{V_OM}, v{V_T2}")
    E.e(f"v_mul_f32 v{V_T3}, s{S_C}, v{V_T3}")
    E.e(f"v_mul_f32 v{V_T1}, s{S_C}, v{V_T1}")
    E.e(f"v_exp_f32 v{V_T3}, v{V_T3}")
    E.e(f"v_exp_f32 v{V_T1}, v{V_T1}")
    E.e("s_nop 0")
    E.e(f"v_mul_f32 v{V_L}, v{V_L}, v{V_T3}")
    E.e(f"v_fma_f32 v{V_L}, v{V_OL}, v{V_T1}, v{V_L}")
    E.e(f"v_rcp_f32 v{V_T0}, v{V_L}")
    E.e("s_nop 0")
    E.e(f"v_mul_f32 v{V_ALPHA}, v{V_T3}, v{V_T0}")
    E.e(f"v_mul_f32 v{V_FOT}, v{V_T1}, v{V_T0}")
    store_epilogue(True)
    stamp(5)
    E.e("s_branch .Lfin")

    for par in range(2):
        E.block(f"rare{par}")
        E.label(f".Lrare{par}")
        tile_max(par, V_T0, V_T1)
        E.e(f"v_max_f32 v{V_T0}, v{V_T0}, v{V_M}")
        E.e(f"v_sub_f32 v{V_T1}, v{V_M}, v{V_T0}")
        E.e(f"v_mul_f32 v{V_T1}, s{S_C}, v{V_T1}")
        E.e(f"v_exp_f32 v{V_ALPHA}, v{V_T1}")
        E.e(f"v_mov_b32 v{V_M}, v{V_T0}")
        E.e(f"v_mul_f32 v{V_NMC}, s{S_C}, v{V_M}")
        E.e(f"v_sub_f32 v{V_NMC}, 0, v{V_NMC}")
        E.e(f"v_mul_f32 v{V_L}, v{V_L}, v{V_ALPHA}")
        for i in range(0, 128, 4):
            for r_ in range(4):
                E.e(f"v_accvgpr_read_b32 v{TMP + 8 + r_}, a{A_O + i + r_}")
            for r_ in range(4):
                E.e(f"v_mul_f32 v{TMP + 8 + r_}, v{TMP + 8 + r_}, v{V_ALPHA}")
            for r_ in range(4):
                E.e(f"v_accvgpr_write_b32 a{A_O + i + r_}, v{TMP + 8 + r_}")
        run_ops(sm_stream(par, list(range(16)), first=True))
        E.e(f"v_add_f32 v{V_SA}, v{V_SA}, v{V_SB}")
        E.e(f"s_add_u32 s{S_RET}, s{S_RET}, 4")
        E.e(f"s_addc_u32 s{S_RET + 1}, s{S_RET + 1}, 0")
        E.e("s_nop 1")
        E.e(f"s_setpc_b64 s[{S_RET}:{S_RET + 1}]")

    E.block("end")
    E.label(".Lfin")
    if STAMP:
        E.e("s_waitcnt vmcnt(0)")
        stamp(10)
        stamp(11, True)
        E.e("s_lshl_b32 s64, s2, 2")
        E.e(f"s_add_u32 s64, s64, s{S_WAVE}")
        E.e("s_lshl_b32 s64, s64, 6")
        E.e("s_add_u32 s64, s64, 0x8000000")
        E.e("v_mov_b32 v1, s64")
        E.e("s_mov_b64 exec, 1")
        for i in range(12):
            E.e(f"v_mov_b32 v2, s{86 + i}")
            E.e(f"buffer_store_dword v2, v1, s[20:23], 0 offen offset:{4 * i}")
            E.e("s_nop 1")
        E.e("s_waitcnt vmcnt(0)")
        if STAMPD:
            E.e("s_and_b32 s64, s2, 0xffef")
            E.e(f"s_or_b32 s64, s64, s{S_WAVE}")
            E.e("s_cmp_eq_u32 s64, 0")
            E.e("s_cbranch_scc0 .Lnodbg")
            E.e("s_lshl_b32 s64, s2, 1")
            E.e("v_mov_b32 v1, s64")
            for i, sl in enumerate((2, 3, 4, 5, 10, 6, 7)):
                E.e(f"s_sub_u32 s65, s{86 + sl}, s86")
                E.e("v_mov_b32 v2, s65")
                E.e(f"buffer_store_dword v2, v1, s[24:27], 0 offen offset:{4 * i}")
                E.e("s_nop 1")
            E.e("s_sub_u32 s65, s97, s87")
            E.e("v_mov_b32 v2, s65")
            E.e("buffer_store_dword v2, v1, s[24:27], 0 offen offset:28")
            E.e("s_waitcnt vmcnt(0)")
            E.label(".Lnodbg")
        if STAMP2:
            E.e("s_mov_b64 exec, -1")
            E.e("s_lshl_b32 s64, s2, 2")
            E.e(f"s_add_u32 s64, s64, s{S_WAVE}")
            E.e("s_lshl_b32 s64, s64, 9")
            E.e("s_add_u32 s64, s64, 0x9000000")
            E.e(f"v_lshl_add_u32 v1, v{V_LANE}, 2, s64")
            E.e("buffer_store_dword v222, v1, s[20:23], 0 offen")
            E.e("buffer_store_dword v223, v1, s[20:23], 0 offen offset:256")
            E.e("s_waitcnt vmcnt(0)")
    E.label(".Lend")
    E.e("s_endpgm")


HEADER = """; Causal flash-attention forward, B=1 H=16 S=2048 D=256 bf16 (generated by work/gen.py)
; @launch grid=(256,1,1) block=(256,1,1) lds=163840
.amdgcn_target "amdgcn-amd-amdhsa--gfx950"
.text
.globl standalone__softmax_full_causal__prompt_kernel
.p2align 8
.type standalone__softmax_full_causal__prompt_kernel,@function
standalone__softmax_full_causal__prompt_kernel:
"""
FOOTER = """.section .rodata,"a"
.p2align 6
.amdhsa_kernel standalone__softmax_full_causal__prompt_kernel
  .amdhsa_next_free_vgpr 512
  .amdhsa_next_free_sgpr 102
  .amdhsa_accum_offset 256
  .amdhsa_group_segment_fixed_size 0
  .amdhsa_kernarg_size 48
  .amdhsa_user_sgpr_count 2
  .amdhsa_user_sgpr_kernarg_segment_ptr 1
  .amdhsa_system_sgpr_workgroup_id_x 1
.end_amdhsa_kernel
"""

if __name__ == "__main__":
    gen()
    for name in E.order:
        b = E.blocks[name]
        nb = []
        for l in b:
            if nb and l.endswith(" lds") and " m0," in nb[-1]:
                nb.append("s_nop 0")
            nb.append(l)
        E.blocks[name] = nb
    out = HEADER
    for name in E.order:
        out += f"; ---- {name}\n"
        for l in E.blocks[name]:
            out += ("" if l.endswith(":") else "    ") + l + "\n"
    out += FOOTER
    open(sys.argv[1], "w").write(out)
    import pickle
    pickle.dump((E.order, E.blocks), open("blocks.pkl", "wb"))
    n = sum(len(b) for b in E.blocks.values())
    print("instructions:", n, {k: len(v) for k, v in E.blocks.items()})
```

```python
import struct
import sys
import re

N0 = 18
N1 = 12
LK = 8
LV = 6
BAR_GAP = 28
BUDGET = 24
DMA_COST = 8
STAMP = 0
NODMA = 0
NOSM = 0
NOLDS = 0
FIXPTR = 0
BULK = 0
STAMP2 = 0
STAMPD = 0
CODEPF = 0
FINE = 0
QLDS = 1
EPLDS = 1
MF16 = 0
LITE = 1
PBIG = 2
LATE = 0
DMA_TAILPG = 1
DMA_STRIDE = 2
PFD = 3
for a in sys.argv[2:]:
    k, v = a.split("=")
    globals()[k] = int(v)


def f2u(x):
    return struct.unpack("<I", struct.pack("<f", x))[0]


C_SCALE = 0.0625 * 1.4426950408889634
THR = 65536.0
NEGBIG = 0xF149F2CA

def S_(buf, b):
    return 32 * buf + 16 * b
P0 = 64
KF = 96
VF = 128
KA = 160
VA = 168
KD = 172
VD = 180
TMP = 184
V_L = 200
V_M = 201
V_NMC = 202
V_SA = 203
V_SB = 204
V_QREL = 207
V_THR = 208
V_NEG = 209
V_LANE = 210
V_T0 = 211
V_T1 = 212
V_T2 = 213
V_QOFF = 214
V_WSOFF = 215
V_ALPHA = 216
V_T3 = 217
V_THRC = 218
V_PF = 219
V_PFD = 220
V_OL = 225
V_OM = 226
V_FLAG = 227
V_FOT = 228
EP = 0

A_O = 0
A_Q = 128
A_Q2 = 192

S_C = 28
S_WB = 29
S_KN = 30
S_VN = 31
S_ENDA = 32
S_STARTB = 33
S_ENDB = 34
S_OOB = 35
S_CNT = 36
S_KEY0 = 37
S_NSEG = 38
S_ACT = 39
S_RET = 40
S_MK = 42
S_QB = 50
S_T0 = 51
S_N = 52
S_QB2 = 53
S_T02 = 54
S_N2 = 55
S_ACT2 = 56
S_TMP = 57
S_TMP2 = 58
S_PID = 59
S_WAVE = 60
S_TMP3 = 61
S_SOFF = 62
S_SHIFT = 63
S_PFK = 66
S_PFV = 67
S_FIRST = 68
S_PUB = 69
S_HAVE = 70
S_QS = 71


class Em:
    def __init__(self):
        self.blocks = {}
        self.order = []
        self.cur = None
        self.ldsq = []
        self.pend = None

    def block(self, name):
        self.cur = []
        self.blocks[name] = self.cur
        self.order.append(name)

    def e(self, s):
        self.cur.append(s)

    def label(self, l):
        self.cur.append(l + ":")

    def ds(self, text, dst):
        self.e(text)
        self.ldsq.append(set(dst))
        assert len(self.ldsq) <= 15, "too many outstanding LDS ops"

    def need(self, regs):
        regs = set(regs)
        last = -1
        for i, d in enumerate(self.ldsq):
            if d & regs:
                last = i
        if last >= 0:
            n = len(self.ldsq) - 1 - last
            self.e(f"s_waitcnt lgkmcnt({n})")
            self.ldsq = self.ldsq[last + 1:]
            return True
        return False

    def lds_drain(self):
        self.ldsq = []

    def lds_drain_keep(self):
        pass


E = Em()


def vr(a, n):
    return f"v[{a}:{a + n - 1}]"


def ar(a, n):
    return f"a[{a}:{a + n - 1}]"


def kfrag(i):
    return KF + 4 * (i % 8)


def vfrag(i):
    return VF + 4 * (i % 8)


def k_read(i, slot):
    b, s = divmod(i, 16)
    off = slot * 32768 + b * 16384 + (s // 8) * 256
    d = kfrag(i)
    E.ds(f"ds_read_b128 {vr(d, 4)}, v{KA + s % 8} offset:{off}", range(d, d + 4))


def v_read(i, slot, half):
    s, j = divmod(i, 8)
    off = slot * 32768 + s * 8192 + (j // 4) * 256 + half * 4096
    d = vfrag(i) + 2 * half
    E.ds(f"ds_read_b64_tr_b16 {vr(d, 2)}, v{VA + j % 4} offset:{off}", range(d, d + 2))


def qk_mfma(i, sbuf):
    b, s = divmod(i, 16)
    regs = list(range(kfrag(i), kfrag(i) + 4))
    if i % 2 == 0 and i + 1 < 32:
        regs += list(range(kfrag(i + 1), kfrag(i + 1) + 4))
    E.need(regs)
    D = vr(S_(sbuf, b), 16)
    C = D if s > 0 else "0"
    if MF16:
        for hh in range(2):
            D = vr(S_(sbuf, b) + 4 * hh, 4)
            C = D if s > 0 else "0"
            t = f"v_mfma_f32_16x16x32_bf16 {D}, {vr(kfrag(i), 4)}, {ar(A_Q + 4 * s, 4)}, {C}"
            if hh == 0:
                E.e(t)
            else:
                E.pend = t
        return
    E.e(f"v_mfma_f32_32x32x16_bf16 {D}, {vr(kfrag(i), 4)}, {ar(A_Q + 4 * s, 4)}, {C}")


def pv_mfma(i, pbuf):
    s, j = divmod(i, 8)
    regs = list(range(vfrag(i), vfrag(i) + 4))
    if i % 2 == 0 and i + 1 < 32:
        regs += list(range(vfrag(i + 1), vfrag(i + 1) + 4))
    E.need(regs)
    D = ar(A_O + 16 * j, 16)
    if MF16:
        for hh in range(2):
            D = ar(A_O + 16 * j + 4 * hh, 4)
            t = f"v_mfma_f32_16x16x32_bf16 {D}, {vr(vfrag(i), 4)}, {vr(P0 + 16 * pbuf + 4 * s, 4)}, {D}"
            if hh == 0:
                E.e(t)
            else:
                E.pend = t
        return
    E.e(f"v_mfma_f32_32x32x16_bf16 {D}, {vr(vfrag(i), 4)}, {vr(P0 + 16 * pbuf + 4 * s, 4)}, {D}")


def dma_ops(kslot, vslot, pf=True):
    ops = []

    def m0(val):
        return (4, lambda: E.e(f"s_add_u32 m0, s{S_WB}, {val}"))

    def ld(voff, srd, soff, imm):
        if NODMA and E.cur is not E.blocks.get("setup"):
            return (0, lambda: None)
        return (DMA_COST, lambda: E.e(f"buffer_load_dwordx4 v{voff}, s[{srd}:{srd + 3}], s{soff} offen offset:{imm} lds"))

    for g in range(2):
        ops.append(m0(65536 + vslot * 32768 + 4096 * g))
        for jj in range(4):
            ops.append(ld(VD + 2 * g + (jj % 2), 12, S_VN, 1024 * jj))
    for g in range(2):
        ops.append(m0(kslot * 32768 + 4096 * g))
        for jj in range(4):
            ops.append(ld(KD + 4 * g + jj, 8, S_KN, 1024 * jj))
    ops.append((4, lambda: E.e(f"s_mov_b32 s{S_VN}, s{S_KN}")))
    ops.append(upd(S_KN))
    if pf and PFD:
        ops += pf_ops()
    return ops


def upd(sp):
    def f():
        if FIXPTR:
            return
        E.e(f"s_add_u32 s{sp}, s{sp}, 0x8000")
        E.e(f"s_cmp_eq_u32 s{sp}, s{S_ENDA}")
        E.e(f"s_cselect_b32 s{sp}, s{S_STARTB}, s{sp}")
        E.e(f"s_cmp_eq_u32 s{sp}, s{S_ENDB}")
        E.e(f"s_cselect_b32 s{sp}, s{S_OOB}, s{sp}")
    return (20, f)


def pf_ops():
    return [(DMA_COST, lambda: E.e(f"buffer_load_dword v{V_PFD}, v{V_PF}, s[12:15], s{S_PFK} offen")),
            (DMA_COST, lambda: E.e(f"buffer_load_dword v{V_PFD + 1}, v{V_PF}, s[8:11], s{S_PFK} offen")),
            (4, lambda: E.e(f"s_add_u32 s{S_PFK}, s{S_PFK}, 0x8000"))]


def sm_stream(sbuf, pairs, first):
    ops = []
    n = len(pairs)
    st = {"first": first}

    def T(idx):
        return TMP + 2 * (idx % 4)

    def F(idx):
        k = pairs[idx]
        r = 32 * sbuf + 2 * k
        t = T(idx)
        ops.append((4, lambda: E.e(f"v_fma_f32 v{t}, v{r}, s{S_C}, v{V_NMC}")))
        ops.append((4, lambda: E.e(f"v_fma_f32 v{t + 1}, v{r + 1}, s{S_C}, v{V_NMC}")))

    def X(idx):
        t = T(idx)
        ops.append((8, lambda: E.e(f"v_exp_f32 v{t}, v{t}")))
        ops.append((8, lambda: E.e(f"v_exp_f32 v{t + 1}, v{t + 1}")))

    def A(idx):
        k = pairs[idx]
        t = T(idx)
        p = P0 + 16 * sbuf + k
        if st["first"]:
            st["first"] = False
            ops.append((4, lambda: E.e(f"v_mov_b32 v{V_SA}, v{t}")))
            ops.append((4, lambda: E.e(f"v_mov_b32 v{V_SB}, v{t + 1}")))
        else:
            ops.append((4, lambda: E.e(f"v_add_f32 v{V_SA}, v{V_SA}, v{t}")))
            ops.append((4, lambda: E.e(f"v_add_f32 v{V_SB}, v{V_SB}, v{t + 1}")))
        ops.append((4, lambda: E.e(f"v_cvt_pk_bf16_f32 v{p}, v{t}, v{t + 1}")))

    for i in range(n + 2):
        if i < n:
            F(i)
        if 1 <= i <= n:
            X(i - 1)
        if i >= 2:
            A(i - 2)
    if NOSM:
        return []
    return ops


def mask_ops(sbuf, b):
    ops = []
    for q in range(4):
        for r4 in range(4):
            r = 4 * q + r4
            o = 32 * b + 8 * q + r4
            ops.append((4, lambda o=o, r4=r4: E.e(f"v_cmp_lt_i32 s[{S_MK + 2 * r4}:{S_MK + 2 * r4 + 1}], v{V_THR}, {o}")))
        for r4 in range(4):
            r = 4 * q + r4
            reg = S_(sbuf, b) + r
            ops.append((4, lambda reg=reg, r4=r4: E.e(f"v_cndmask_b32 v{reg}, v{reg}, v{V_NEG}, s[{S_MK + 2 * r4}:{S_MK + 2 * r4 + 1}]")))
    return ops


def run_ops(ops):
    for c, f in ops:
        f()


def schedule(mf, fixed, stream, first_gap, last_gap):
    n = len(mf)
    free = []
    for g in range(n):
        c = sum(x[0] for x in fixed[g]) + 2
        free.append(max(0, BUDGET - c) if first_gap <= g <= last_gap else 0)
    T = sum(x[0] for x in stream)
    F = sum(free)
    scale = T / F if F > 0 else 0
    credit = 0.0
    si = 0
    for g in range(n):
        mf[g]()
        ops = list(fixed[g])
        if first_gap <= g <= last_gap:
            credit += free[g] * scale
            while si < len(stream) and (credit >= stream[si][0] * 0.5 or g == last_gap):
                credit -= stream[si][0]
                ops.append(stream[si])
                si += 1
        tot = sum(o[0] for o in ops)
        acc = 0
        for o in ops:
            if E.pend and acc >= tot / 2:
                E.e(E.pend); E.pend = None
            o[1]()
            acc += o[0]
        if E.pend:
            E.e(E.pend); E.pend = None
    assert si == len(stream)


_rare_sites = []


def check_and_accumulate(par, tag):
    E.e(f"v_add_f32 v{V_SA}, v{V_SA}, v{V_SB}")
    E.e(f"v_cmp_nle_f32 vcc, v{V_SA}, v{V_THRC}")
    E.e("s_nop 3")
    E.e(f"s_cbranch_vccz .Lok_{tag}")
    E.e(f"s_getpc_b64 s[{S_RET}:{S_RET + 1}]")
    E.e(f"s_branch .Lrare{par}")
    E.label(f".Lok_{tag}")
    E.e(f"v_add_f32 v{V_L}, v{V_L}, v{V_SA}")


def b_tail_fixed(fixed, kslot_next, dma):
    def bar():
        if STAMP2:
            E.e("s_waitcnt lgkmcnt(0)")
            E.e("s_memtime s[98:99]")
            E.e("s_waitcnt lgkmcnt(0)")
            E.e(f"v_cmp_eq_u32 vcc, s96, v{V_LANE}")
            E.e("v_mov_b32 v224, s98")
            E.e("s_nop 1")
            E.e("v_cndmask_b32 v222, v222, v224, vcc")
        E.e(f"s_waitcnt vmcnt({2 if PFD else 0}) lgkmcnt(0)")
        E.lds_drain()
        E.e("s_barrier")
        if STAMP2:
            E.e("s_memtime s[98:99]")
            E.e("s_waitcnt lgkmcnt(0)")
            E.e("v_mov_b32 v224, s98")
            E.e("v_cndmask_b32 v223, v223, v224, vcc")
            E.e("s_add_u32 s96, s96, 1")
    fixed[BAR_GAP].append((8, bar))
    ng = 32 - BAR_GAP
    idx = 0
    per = (LK + ng - 1) // ng
    for g in range(BAR_GAP, 32):
        for _ in range(per):
            if idx < LK:
                fixed[g].append((4, lambda i=idx: k_read(i, kslot_next)))
                idx += 1
    nd = 0
    for g in range(BAR_GAP, 32):
        for _ in range(DMA_TAILPG):
            if dma:
                fixed[g].append(dma.pop(0))
    return dma


NDMA_TAIL = DMA_TAILPG * (32 - BAR_GAP)


def phase_a(par, dma_rest, with_mfma=True, tag=""):
    nb = 1 - par
    mf = []
    fixed = [[] for _ in range(32)]
    for i in range(32):
        if with_mfma:
            mf.append(lambda i=i: qk_mfma(i, nb))
            if i + LK < 32:
                fixed[i].append((4, lambda i=i: k_read(i + LK, nb)))
        else:
            mf.append(lambda: None)
    g = 0
    for op in dma_rest:
        fixed[g].append(op)
        g += DMA_STRIDE if op[0] > 4 else 0
        g = min(g, 31)
    g0 = 32 - LV
    for k in range(LV):
        fixed[g0 + k - 1].append((4, lambda k=k: v_read(k, par, 0)))
        fixed[g0 + k - 1].append((4, lambda k=k: v_read(k, par, 1)))
    stream = sm_stream(par, list(range(N1 // 2, 16)), first=(N1 == 0))
    schedule(mf, fixed, stream, 0, 29)
    check_and_accumulate(par, tag)


def phase_b(par, masked, last, nosm=False):
    nb = 1 - par
    mf = [lambda i=i: pv_mfma(i, par) for i in range(32)]
    fixed = [[] for _ in range(32)]
    for i in range(32):
        if i + LV < 32:
            fixed[i].append((4, lambda i=i: v_read(i + LV, par, 0)))
            fixed[i].append((4, lambda i=i: v_read(i + LV, par, 1)))
    stream = []
    dma = []
    if not last:
        if masked and not nosm:
            stream += mask_ops(nb, 0)
        if not nosm:
            stream += sm_stream(nb, list(range(0, N1 // 2)), first=True)
        if masked and not nosm:
            stream += mask_ops(nb, 1)
        dma = dma_ops(nb, par)
        dma = b_tail_fixed(fixed, par, dma)
    schedule(mf, fixed, stream, 1 if not masked else 1, BAR_GAP - 1)
    return dma


def set_thr(off_tiles_from_end):
    E.e(f"s_add_u32 s{S_TMP}, s{S_T0}, s{S_N}")
    E.e(f"s_sub_u32 s{S_TMP}, s{S_TMP}, {off_tiles_from_end}")
    E.e(f"s_lshl_b32 s{S_TMP}, s{S_TMP}, 6")
    E.e(f"v_subrev_u32 v{V_THR}, s{S_TMP}, v{V_QREL}")


def iteration(par, masked, tag, dma_in):
    phase_a(par, dma_in, True, tag)
    return phase_b(par, masked, False)


def tile_max(sbuf, dst, t1):
    base = 32 * sbuf
    E.e(f"v_max3_f32 v{dst}, v{base}, v{base + 1}, v{base + 2}")
    E.e(f"v_max3_f32 v{t1}, v{base + 3}, v{base + 4}, v{base + 5}")
    r = 6
    acc = [dst, t1]
    k = 0
    while r + 1 < 32:
        E.e(f"v_max3_f32 v{acc[k]}, v{acc[k]}, v{base + r}, v{base + r + 1}")
        k ^= 1
        r += 2
    E.e(f"v_max_f32 v{dst}, v{dst}, v{t1}")
    E.e(f"v_mov_b32 v{t1}, v{dst}")
    E.e("s_nop 1")
    E.e(f"v_permlane32_swap_b32 v{dst}, v{t1}")
    E.e(f"v_max_f32 v{dst}, v{dst}, v{t1}")


def flag_addr():
    E.e(f"s_lshl_b32 s{S_TMP}, s{S_PID}, 2")
    E.e(f"s_add_u32 s{S_TMP}, s{S_TMP}, s{S_WAVE}")
    E.e(f"s_and_b32 s{S_SHIFT}, s{S_TMP}, 31")
    E.e(f"s_lshr_b32 s{S_TMP}, s{S_TMP}, 5")
    E.e(f"s_lshl_b32 s{S_TMP}, s{S_TMP}, 2")
    E.e(f"s_add_u32 s{S_TMP}, s{S_TMP}, 64")
    E.e(f"v_mov_b32 v{V_T2}, s{S_TMP}")
    E.e(f"s_lshl_b32 s{S_TMP2}, 1, s{S_SHIFT}")
    E.e(f"v_mov_b32 v{V_T3}, s{S_TMP2}")


def flag_test():
    E.e(f"v_readfirstlane_b32 s{S_TMP3}, v{V_FLAG}")
    E.e("s_nop 3")
    E.e(f"s_lshr_b32 s{S_TMP3}, s{S_TMP3}, s{S_SHIFT}")
    E.e(f"s_and_b32 s{S_TMP3}, s{S_TMP3}, 1")
    E.e(f"s_cmp_lg_u32 s{S_TMP3}, 0")


def partner_loads():
    E.e(f"s_mov_b32 s{S_SOFF}, 0")
    for g in range(16):
        E.e(f"buffer_load_dwordx4 {ar(A_Q2 + 4 * g, 4)}, v{V_WSOFF}, s[20:23], s{S_SOFF} offen offset:{1024 * (g % 4)} sc1")
        if g % 4 == 3:
            E.e(f"s_add_u32 s{S_SOFF}, s{S_SOFF}, 0x1000")
    E.e(f"buffer_load_dword v{V_OL}, v{V_WSOFF}, s[20:23], s{S_SOFF} offen sc1")
    E.e(f"buffer_load_dword v{V_OM}, v{V_WSOFF}, s[20:23], s{S_SOFF} offen offset:4 sc1")


def store_epilogue(partner):
    WA = 96
    RA = 104
    GO = 108
    RB = 112
    if EPLDS:
        L = V_LANE
        E.e(f"s_add_u32 s{S_TMP}, s{S_WB}, 0x20000")
        E.e(f"v_and_b32 v{V_T0}, 31, v{L}")
        E.e(f"v_lshrrev_b32 v{V_T1}, 5, v{L}")
        E.e(f"v_and_b32 v{V_T2}, 15, v{L}")
        E.e(f"v_xor_b32 v{V_T2}, v{V_T2}, v{V_T1}")
        E.e(f"v_lshl_add_u32 v{V_T0}, v{V_T0}, 8, s{S_TMP}")
        for k in range(8):
            E.e(f"v_xor_b32 v{WA + k}, {2 * k}, v{V_T2}")
            E.e(f"v_lshl_add_u32 v{WA + k}, v{WA + k}, 4, v{V_T0}")
        E.e(f"v_lshrrev_b32 v{V_T1}, 4, v{L}")
        E.e(f"v_and_b32 v{V_T2}, 15, v{L}")
        for i in range(4):
            E.e(f"v_add_u32 v{RA + i}, {4 * i}, v{V_T1}")
            E.e(f"v_xor_b32 v{V_T3}, v{RA + i}, v{V_T2}")
            E.e(f"v_lshlrev_b32 v{V_T3}, 4, v{V_T3}")
            E.e(f"v_lshl_add_u32 v{RA + i}, v{RA + i}, 8, v{V_T3}")
            E.e(f"v_add_u32 v{RA + i}, s{S_TMP}, v{RA + i}")
        E.e(f"s_lshl_b32 s{S_TMP2}, s{S_WAVE}, 14")
        E.e(f"v_lshlrev_b32 v{GO}, 9, v{V_T1}")
        E.e(f"v_lshl_add_u32 v{GO}, v{V_T2}, 4, v{GO}")
        E.e(f"v_add_u32 v{GO}, s{S_TMP2}, v{GO}")
    for j in range(8):
        x = EP + 32 * (j % 2)
        for r_ in range(16):
            E.e(f"v_accvgpr_read_b32 v{x + r_}, a{A_O + 16 * j + r_}")
        if partner:
            for k in range(8):
                E.e(f"v_accvgpr_read_b32 v{x + 16 + k}, a{A_Q2 + 8 * j + k}")
        for r_ in range(16):
            E.e(f"v_mul_f32 v{x + r_}, v{x + r_}, v{V_ALPHA}")
        if partner:
            for k in range(8):
                E.e(f"v_lshlrev_b32 v{TMP + k}, 16, v{x + 16 + k}")
                E.e(f"v_and_b32 v{TMP + 8 + k}, 0xffff0000, v{x + 16 + k}")
            for k in range(8):
                E.e(f"v_fma_f32 v{x + 2 * k}, v{TMP + k}, v{V_FOT}, v{x + 2 * k}")
                E.e(f"v_fma_f32 v{x + 2 * k + 1}, v{TMP + 8 + k}, v{V_FOT}, v{x + 2 * k + 1}")
        for k in range(8):
            E.e(f"v_cvt_pk_bf16_f32 v{x + 16 + k}, v{x + 2 * k}, v{x + 2 * k + 1}")
        E.e("s_nop 1")
        for gp in range(2):
            y = x + 16 + 4 * gp
            E.e(f"v_permlane32_swap_b32 v{y}, v{y + 2}")
            E.e(f"v_permlane32_swap_b32 v{y + 1}, v{y + 3}")
        for gp in range(2):
            y = x + 16 + 4 * gp
            if EPLDS:
                E.e(f"ds_write_b128 v{WA + 2 * (j % 4) + gp}, {vr(y, 4)}")
            else:
                E.e(f"buffer_store_dwordx4 {vr(y, 4)}, v{V_QOFF}, s[16:19], s{S_QB} offen offset:{64 * j + 32 * gp}")
        if EPLDS and j % 4 == 3:
            hh = j // 4
            for i in range(8):
                E.e(f"ds_read_b128 {vr(RB + 4 * i, 4)}, v{RA + i % 4} offset:{4096 * (i // 4)}")
            E.e(f"s_mov_b32 s{S_SOFF}, s{S_QB}")
            for i in range(8):
                E.e(f"s_waitcnt lgkmcnt({7 - i})")
                E.e(f"buffer_store_dwordx4 {vr(RB + 4 * i, 4)}, v{GO}, s[16:19], s{S_SOFF} offen offset:{256 * hh} sc0 sc1")
                if i < 7:
                    E.e(f"s_add_u32 s{S_SOFF}, s{S_SOFF}, 0x800")


def stamp(i, real=False):
    if not STAMP:
        return
    assert not E.ldsq or True
    E.e("s_memrealtime s[98:99]" if real else "s_memtime s[98:99]")
    E.e("s_waitcnt lgkmcnt(0)")
    E.lds_drain_keep()
    E.e(f"s_mov_b32 s{86 + i}, s98")


def gen():
    E.block("setup")
    E.e("s_cmp_ge_u32 s2, 256")
    E.e("s_cbranch_scc1 .Lend")
    stamp(0)
    stamp(1, True)
    if STAMP2:
        E.e("s_mov_b32 s96, 0")
        E.e("v_mov_b32 v222, 0")
        E.e("v_mov_b32 v223, 0")
    E.e("s_load_dwordx4 s[4:7], s[0:1], 0")
    E.e("s_load_dwordx4 s[8:11], s[0:1], 16")
    E.e("s_load_dwordx4 s[12:15], s[0:1], 32")
    E.e(f"v_lshrrev_b32 v{V_T0}, 6, v0")
    E.e(f"v_and_b32 v{V_LANE}, 63, v0")
    E.e("s_nop 0")
    E.e(f"v_readfirstlane_b32 s{S_WAVE}, v{V_T0}")
    E.e("s_and_b32 s64, s2, 7")
    E.e("s_lshr_b32 s65, s2, 3")
    E.e("s_and_b32 s66, s65, 1")
    E.e("s_lshl_b32 s64, s64, 1")
    E.e("s_add_u32 s64, s64, s66")
    E.e("s_lshr_b32 s65, s65, 1")
    E.e("s_and_b32 s67, s65, 1")
    E.e("s_lshl_b32 s85, s65, 16")
    E.e("s_mov_b32 s97, s85")
    E.e("s_lshr_b32 s65, s65, 1")
    E.e(f"s_lshl_b32 s{S_PID}, s64, 3")
    E.e(f"s_add_u32 s{S_PID}, s{S_PID}, s65")
    E.e("s_lshl_b32 s68, s64, 20")
    E.e("s_waitcnt lgkmcnt(0)")
    if FINE == 2:
        stamp(6)
    E.e("s_mov_b32 s70, s6"); E.e("s_mov_b32 s71, s7")
    E.e("s_mov_b32 s72, s8"); E.e("s_mov_b32 s73, s9")
    E.e("s_mov_b32 s74, s10"); E.e("s_mov_b32 s75, s11")
    E.e("s_mov_b32 s76, s12"); E.e("s_mov_b32 s77, s13")
    E.e("s_mov_b32 s78, s14"); E.e("s_mov_b32 s79, s15")
    for (srd, lo, hi) in ((4, 4, 5), (8, 70, 71), (12, 72, 73), (16, 74, 75)):
        E.e(f"s_add_u32 s{srd}, s{lo}, s68")
        E.e(f"s_addc_u32 s{srd + 1}, s{hi}, 0")
        E.e(f"s_and_b32 s{srd + 1}, s{srd + 1}, 0xffff")
        E.e(f"s_mov_b32 s{srd + 2}, 0x100000")
        E.e(f"s_mov_b32 s{srd + 3}, 0x00020000")
    E.e("s_mov_b32 s20, s78"); E.e("s_and_b32 s21, s79, 0xffff")
    E.e("s_mov_b32 s22, 0x10000000"); E.e("s_mov_b32 s23, 0x00020000")
    E.e("s_mov_b32 s24, s76"); E.e("s_and_b32 s25, s77, 0xffff")
    E.e("s_mov_b32 s26, 256"); E.e("s_mov_b32 s27, 0x00020000")
    E.e(f"s_mov_b32 s{S_C}, {f2u(C_SCALE):#x}")
    E.e(f"s_lshl_b32 s{S_WB}, s{S_WAVE}, 13")
    E.e(f"s_mov_b32 s{S_OOB}, 0x40000000")
    E.e("s_lshl_b32 s69, s65, 1")
    E.e("s_sub_u32 s80, 32, s69")
    E.e("s_add_u32 s81, s69, 2")
    E.e("s_sub_u32 s82, 15, s65")
    E.e("s_lshl_b32 s82, s82, 16")
    E.e("s_lshl_b32 s83, s65, 16")
    E.e(f"s_cmp_lt_u32 s65, {PBIG}")
    E.e(f"s_cselect_b32 s84, {N0 + 2}, {N0}")
    E.e(f"s_min_u32 s84, s80, s84")
    E.e("s_sub_u32 s85, s80, s84")
    E.e("s_cmp_eq_u32 s67, 0")
    E.e("s_cbranch_scc0 .Lwg1")
    E.e(f"s_mov_b32 s{S_QB}, s82")
    E.e(f"s_mov_b32 s{S_T0}, 0")
    E.e(f"s_mov_b32 s{S_N}, s84")
    E.e(f"s_mov_b32 s{S_NSEG}, 1")
    E.e(f"s_cmp_lg_u32 s85, 0")
    E.e(f"s_cselect_b32 s{S_ACT}, 1, 0")
    E.e(f"s_mov_b32 s{S_ENDA}, 1")
    E.e(f"s_mov_b32 s{S_STARTB}, 1")
    E.e(f"s_lshl_b32 s{S_ENDB}, s84, 15")
    E.e("s_branch .Lsegdone")
    E.label(".Lwg1")
    E.e(f"s_cmp_lg_u32 s85, 0")
    E.e(f"s_cselect_b32 s{S_NSEG}, 2, 1")
    E.e(f"s_cbranch_scc0 .Lwg1_single")
    E.e(f"s_mov_b32 s{S_QB}, s82")
    E.e(f"s_mov_b32 s{S_T0}, s84")
    E.e(f"s_mov_b32 s{S_N}, s85")
    E.e(f"s_mov_b32 s{S_ACT}, 2")
    E.e(f"s_mov_b32 s{S_QB2}, s83")
    E.e(f"s_mov_b32 s{S_T02}, 0")
    E.e(f"s_mov_b32 s{S_N2}, s81")
    E.e(f"s_mov_b32 s{S_ACT2}, 0")
    E.e(f"s_lshl_b32 s{S_ENDA}, s80, 15")
    E.e(f"s_mov_b32 s{S_STARTB}, 0")
    E.e(f"s_lshl_b32 s{S_ENDB}, s81, 15")
    E.e("s_branch .Lsegdone")
    E.label(".Lwg1_single")
    E.e(f"s_mov_b32 s{S_QB}, s83")
    E.e(f"s_mov_b32 s{S_T0}, 0")
    E.e(f"s_mov_b32 s{S_N}, s81")
    E.e(f"s_mov_b32 s{S_ACT}, 0")
    E.e(f"s_mov_b32 s{S_ENDA}, 1")
    E.e(f"s_mov_b32 s{S_STARTB}, 1")
    E.e(f"s_lshl_b32 s{S_ENDB}, s81, 15")
    E.label(".Lsegdone")
    L = V_LANE
    E.e(f"v_and_b32 v{V_T0}, 31, v{L}")
    E.e(f"v_lshrrev_b32 v{V_T1}, 5, v{L}")
    E.e(f"s_lshl_b32 s{S_TMP}, s{S_WAVE}, 5")
    E.e(f"v_add_u32 v{V_T2}, s{S_TMP}, v{V_T0}")
    E.e(f"v_lshlrev_b32 v{V_QOFF}, 9, v{V_T2}")
    E.e(f"v_lshl_add_u32 v{V_QOFF}, v{V_T1}, 4, v{V_QOFF}")
    E.e(f"v_and_b32 v{V_T3}, 15, v{L}")
    for j in range(8):
        E.e(f"v_add_u32 v{KA + j}, {2 * j}, v{V_T1}")
        E.e(f"v_xor_b32 v{KA + j}, v{KA + j}, v{V_T3}")
        E.e(f"v_lshlrev_b32 v{KA + j}, 4, v{KA + j}")
        E.e(f"v_lshl_add_u32 v{KA + j}, v{V_T0}, 9, v{KA + j}")
    E.e(f"v_bfe_u32 v{TMP}, v{L}, 2, 2")
    E.e(f"v_and_b32 v{TMP + 1}, 3, v{L}")
    E.e(f"v_bfe_u32 v{TMP + 2}, v{L}, 4, 1")
    E.e(f"v_lshl_add_u32 v{TMP + 3}, v{V_T1}, 2, v{TMP}")
    E.e(f"v_lshlrev_b32 v{TMP + 3}, 9, v{TMP + 3}")
    E.e(f"v_lshl_add_u32 v{TMP + 3}, v{TMP + 2}, 5, v{TMP + 3}")
    E.e(f"v_lshl_add_u32 v{TMP + 3}, v{TMP + 1}, 3, v{TMP + 3}")
    E.e(f"v_add_u32 v{TMP + 3}, 0x10000, v{TMP + 3}")
    for i in range(4):
        E.e(f"v_xor_b32 v{VA + i}, {i}, v{TMP}")
        E.e(f"v_lshl_add_u32 v{VA + i}, v{VA + i}, 6, v{TMP + 3}")
    E.e(f"v_lshl_add_u32 v{TMP + 4}, v{V_T1}, 9, s{S_WB}")
    for j in range(8):
        E.e(f"v_add_u32 v{KD + j}, {2 * j % 16}, v{V_T1}")
        E.e(f"v_xor_b32 v{KD + j}, v{KD + j}, v{V_T0}")
        E.e(f"v_lshl_add_u32 v{KD + j}, v{KD + j}, 4, v{TMP + 4}")
        if j >= 4:
            E.e(f"v_add_u32 v{KD + j}, 0x1000, v{KD + j}")
    for g in range(2):
        for o in range(2):
            d = VD + 2 * g + o
            E.e(f"v_add_u32 v{d}, {2 * o}, v{V_T1}")
            E.e(f"v_lshlrev_b32 v{d}, 2, v{d}")
            E.e(f"v_xor_b32 v{d}, v{d}, v{V_T0}")
            E.e(f"v_lshl_add_u32 v{d}, v{d}, 4, v{TMP + 4}")
            if g:
                E.e(f"v_add_u32 v{d}, 0x1000, v{d}")
    E.e(f"v_mov_b32 v{V_NEG}, {NEGBIG:#x}")
    E.e(f"v_mov_b32 v{V_THRC}, {f2u(THR):#x}")
    E.e(f"s_mul_i32 s{S_TMP}, s{S_WAVE}, 0x9000")
    E.e(f"s_lshl_b32 s{S_TMP2}, s{S_PID}, 18")
    E.e(f"s_add_u32 s{S_TMP}, s{S_TMP}, s{S_TMP2}")
    E.e(f"v_lshl_add_u32 v{V_WSOFF}, v{L}, 4, s{S_TMP}")
    E.e(f"v_and_b32 v{V_PF}, 7, v{L}")
    E.e(f"s_lshl_b32 s{S_TMP}, s65, 12")
    E.e(f"s_lshl_b32 s{S_TMP2}, s{S_WAVE}, 10")
    E.e(f"s_add_u32 s{S_TMP}, s{S_TMP}, s{S_TMP2}")
    E.e(f"v_lshl_add_u32 v{V_PF}, v{V_PF}, 7, s{S_TMP}")
    E.e(f"s_lshl_b32 s{S_KN}, s{S_T0}, 15")
    E.e(f"s_mov_b32 s{S_VN}, s{S_KN}")
    E.e(f"s_mov_b32 s{S_FIRST}, 1")
    E.e(f"s_mov_b32 s{S_PUB}, 0")
    E.e(f"s_mov_b32 s{S_HAVE}, 0")
    if CODEPF:
        E.e("s_getpc_b64 s[90:91]")
        E.label(".Lpc0")
        E.e(f"v_lshlrev_b32 v{TMP}, 7, v{L}")
        E.e(f"v_mov_b32 v{TMP + 1}, 0")
        E.e(f"v_add_co_u32 v{TMP}, vcc, s90, v{TMP}")
        E.e("s_nop 1")
        E.e(f"v_mov_b32 v{TMP + 2}, s91")
        E.e(f"v_addc_co_u32 v{TMP + 1}, vcc, v{TMP + 2}, v{TMP + 1}, vcc")
        for k in range(CODEPF):
            E.e(f"global_load_dword v{V_PFD}, v[{TMP}:{TMP + 1}], off")
            E.e(f"v_add_co_u32 v{TMP}, vcc, 0x2000, v{TMP}")
            E.e("s_nop 1")
            E.e(f"v_addc_co_u32 v{TMP + 1}, vcc, 0, v{TMP + 1}, vcc")
    if FINE == 2:
        stamp(7)
    if QLDS:
        E.e(f"s_lshl_b32 s{S_TMP}, s{S_WAVE}, 14")
        E.e(f"s_cmp_lt_u32 s{S_WAVE}, 2")
        E.e(f"s_cselect_b32 s{S_TMP2}, 2, 1")
        E.e(f"s_lshl_b32 s{S_TMP2}, s{S_TMP2}, 16")
        E.e(f"s_add_u32 s{S_QS}, s{S_TMP}, s{S_TMP2}")
        E.e(f"s_add_u32 s{S_TMP}, s{S_QB}, s{S_WB}")
        for hf in range(2):
            for g in range(2):
                E.e(f"s_add_u32 m0, s{S_QS}, {8192 * hf + 4096 * g}")
                E.e("s_nop 0")
                for jj in range(4):
                    E.e(f"buffer_load_dwordx4 v{KD + 4 * g + jj}, s[4:7], s{S_TMP} offen offset:{1024 * jj} lds")
            if hf == 0:
                E.e(f"s_add_u32 s{S_TMP}, s{S_TMP}, 0x2000")
    else:
        for s_ in range(16):
            E.e(f"buffer_load_dwordx4 {ar(A_Q + 4 * s_, 4)}, v{V_QOFF}, s[4:7], s{S_QB} offen offset:{32 * s_}")
    if FINE == 2:
        stamp(8)
    d0 = dma_ops(0, 0, pf=False)
    run_ops(d0[10:])
    if FINE == 2:
        stamp(9)
    def later():
        run_ops(d0[:10])
        d1 = dma_ops(1, 1, pf=False)[10:]
        run_ops(d1)
        if PFD:
            E.e(f"s_mul_i32 s{S_PFK}, s67, {N0 * 32768}")
            E.e(f"s_add_u32 s{S_PFK}, s{S_PFK}, 0x8000")
            for _ in range(PFD):
                run_ops(pf_ops())
    nyoung = 0
    if not LATE:
        later()
        nyoung = 16 + 2 * PFD
    if STAMP and FINE == 1:
        stamp(6)
        E.e(f"s_waitcnt vmcnt({nyoung + 8 + 15})")
        stamp(7)
        E.e(f"s_waitcnt vmcnt({nyoung + 8})")
        stamp(8)
        E.e(f"s_waitcnt vmcnt({nyoung})")
        stamp(9)
    E.e(f"s_waitcnt vmcnt({nyoung})")
    E.e("s_barrier")
    if LATE:
        later()
    if QLDS:
        for j in range(8):
            E.e(f"v_add_u32 v{TMP + j}, s{S_QS}, v{KA + j}")
        for s_ in range(16):
            E.e(f"ds_read_b128 {ar(A_Q + 4 * s_, 4)}, v{TMP + s_ % 8} offset:{256 * (s_ // 8)}")
            if s_ == 7:
                E.e("s_waitcnt lgkmcnt(0)")
        E.e("s_waitcnt lgkmcnt(0)")

    E.block("prologue")
    E.label(".Lseg")
    E.e(f"s_lshr_b32 s{S_TMP}, s{S_QB}, 9")
    E.e(f"v_lshrrev_b32 v{V_T0}, 9, v{V_QOFF}")
    E.e(f"v_add_u32 v{V_QREL}, s{S_TMP}, v{V_T0}")
    E.e(f"v_lshrrev_b32 v{V_T1}, 5, v{V_LANE}")
    E.e(f"v_lshlrev_b32 v{V_T1}, 2, v{V_T1}")
    E.e(f"v_sub_u32 v{V_QREL}, v{V_QREL}, v{V_T1}")
    for i in range(128):
        E.e(f"v_accvgpr_write_b32 a{A_O + i}, 0")
    E.e(f"v_mov_b32 v{V_L}, 0")
    stamp(2)
    for i in range(LK):
        k_read(i, 0)
    for i in range(32):
        qk_mfma(i, 0)
        if E.pend:
            E.e(E.pend); E.pend = None
        if i + LK < 32:
            k_read(i + LK, 0)
    E.e(f"s_lshl_b32 s{S_TMP}, s{S_T0}, 6")
    E.e(f"v_subrev_u32 v{V_THR}, s{S_TMP}, v{V_QREL}")
    E.e("s_nop 7")
    E.e("s_nop 3")
    run_ops(mask_ops(0, 0))
    run_ops(mask_ops(0, 1))
    tile_max(0, V_M, V_T0)
    E.e(f"v_mul_f32 v{V_NMC}, s{S_C}, v{V_M}")
    E.e(f"v_sub_f32 v{V_NMC}, 0, v{V_NMC}")
    run_ops(sm_stream(0, list(range(0, N1 // 2)), first=True))
    E.e(f"s_cmp_eq_u32 s{S_FIRST}, 1")
    E.e("s_cbranch_scc1 .Lpro1")
    E.e("s_waitcnt vmcnt(0)")
    E.e(f"s_cmp_eq_u32 s{S_PUB}, 1")
    E.e("s_cbranch_scc0 .Lpro1")
    flag_addr()
    E.e("s_mov_b64 exec, 1")
    E.e(f"buffer_atomic_or v{V_T3}, v{V_T2}, s[24:27], 0 offen sc1")
    E.e("s_mov_b64 exec, -1")
    E.label(".Lpro1")
    E.e(f"s_waitcnt vmcnt({2 * PFD + 4 * BULK}) lgkmcnt(0)")
    E.lds_drain()
    E.e("s_barrier")
    stamp(3)
    E.e(f"s_cmp_eq_u32 s{S_NSEG}, 2")
    E.e("s_cbranch_scc0 .Lpro2")
    for s_ in range(16):
        E.e(f"buffer_load_dwordx4 {ar(A_Q2 + 4 * s_, 4)}, v{V_QOFF}, s[4:7], s{S_QB2} offen offset:{32 * s_}")
    E.label(".Lpro2")
    for i in range(LK):
        k_read(i, 1)
    dma = dma_ops(0, 1)
    run_ops(dma[:NDMA_TAIL])
    dma_rest_even = dma[NDMA_TAIL:]
    entry_q = list(E.ldsq)
    E.e(f"s_cmp_eq_u32 s{S_N}, 2")
    E.e("s_cbranch_scc1 .Lt0m")
    E.e(f"s_sub_u32 s{S_CNT}, s{S_N}, 2")
    E.e(f"s_lshr_b32 s{S_CNT}, s{S_CNT}, 1")

    E.block("iter0")
    E.label(".Lloop")
    r = iteration(0, False, "i0", dma_ops(0, 1)[NDMA_TAIL:])
    assert list(E.ldsq) == entry_q
    E.e(f"s_sub_u32 s{S_CNT}, s{S_CNT}, 1")
    E.e(f"s_cmp_eq_u32 s{S_CNT}, 0")
    E.e("s_cbranch_scc1 .Lt1m_pre")
    E.block("iter1")
    iteration(1, False, "i1", dma_ops(1, 0)[NDMA_TAIL:])
    assert list(E.ldsq) == entry_q
    E.e("s_branch .Lloop")
    E.block("iter1m")
    E.label(".Lt1m_pre")
    E.e(f"s_cmp_eq_u32 s{S_ACT}, 1")
    E.e("s_cbranch_scc0 .Lt1m_nf")
    flag_addr()
    E.e(f"buffer_load_dword v{V_FLAG}, v{V_T2}, s[24:27], 0 offen sc0 sc1")
    E.label(".Lt1m_nf")
    set_thr(2)
    iteration(1, True, "i1m", dma_ops(1, 0)[NDMA_TAIL:])
    assert list(E.ldsq) == entry_q
    E.block("iter0m")
    E.e(f"s_cmp_eq_u32 s{S_ACT}, 1")
    E.e("s_cbranch_scc0 .Lt0m")
    flag_test()
    E.e("s_cbranch_scc0 .Lt0m_again")
    partner_loads()
    E.e(f"s_mov_b32 s{S_HAVE}, 1")
    E.e("s_branch .Lt0m")
    E.label(".Lt0m_again")
    E.e(f"buffer_load_dword v{V_FLAG}, v{V_T2}, s[24:27], 0 offen sc0 sc1")
    E.label(".Lt0m")
    if LITE:
        E.e(f"s_cmp_eq_u32 s{S_ACT}, 1")
        E.e("s_cbranch_scc1 .Lt0m_full")
        E.e(f"s_cmp_lt_u32 s{S_WAVE}, 2")
        E.e("s_cbranch_scc1 .Lt0m_lite")
        E.label(".Lt0m_full")
    set_thr(1)
    iteration(0, True, "i0m", dma_ops(0, 1)[NDMA_TAIL:])
    assert list(E.ldsq) == entry_q
    E.block("final1")
    E.e(f"s_cmp_eq_u32 s{S_ACT}, 1")
    E.e("s_cbranch_scc0 .Lf1")
    E.e(f"s_cmp_eq_u32 s{S_HAVE}, 1")
    E.e("s_cbranch_scc1 .Lf1")
    flag_test()
    E.e("s_cbranch_scc0 .Lf1")
    partner_loads()
    E.e(f"s_mov_b32 s{S_HAVE}, 1")
    E.label(".Lf1")
    E.e("s_waitcnt lgkmcnt(0)")
    E.lds_drain()
    phase_a(1, dma_ops(1, 0)[NDMA_TAIL:], with_mfma=False, tag="f1")
    phase_b(1, False, True)
    E.e("s_waitcnt lgkmcnt(0)")
    E.lds_drain()

    if LITE:
        E.e("s_branch .Lepi")
        E.block("lite")
        E.label(".Lt0m_lite")
        E.ldsq = list(entry_q)
        E.e("s_waitcnt lgkmcnt(0)")
        E.lds_drain()
        phase_a(0, dma_ops(0, 1)[NDMA_TAIL:], with_mfma=False, tag="l0")
        phase_b(0, False, False, nosm=True)
        E.e("s_waitcnt lgkmcnt(0)")
        E.lds_drain()
        run_ops(dma_ops(1, 0)[NDMA_TAIL:])
        E.e("s_nop 7")
    E.block("epilogue")
    E.label(".Lepi")
    stamp(4)
    E.e(f"v_mov_b32 v{V_T0}, v{V_L}")
    E.e("s_nop 1")
    E.e(f"v_permlane32_swap_b32 v{V_L}, v{V_T0}")
    E.e(f"v_add_f32 v{V_L}, v{V_L}, v{V_T0}")
    E.e(f"s_cmp_eq_u32 s{S_ACT}, 1")
    E.e("s_cbranch_scc1 .Lcombine")
    E.e(f"s_cmp_eq_u32 s{S_ACT}, 2")
    E.e("s_cbranch_scc1 .Lpublish")
    E.label(".Lstore")
    E.e(f"v_rcp_f32 v{V_ALPHA}, v{V_L}")
    E.e("s_nop 7")
    E.e("s_nop 3")
    store_epilogue(False)
    stamp(5)
    E.e(f"s_cmp_eq_u32 s{S_NSEG}, 2")
    E.e("s_cbranch_scc0 .Lfin")
    if STAMP:
        for i in range(4):
            E.e(f"s_mov_b32 s{86 + 6 + i}, s{86 + 2 + i}")
    E.label(".Lswitch")
    E.e(f"s_mov_b32 s{S_FIRST}, 0")
    E.e(f"s_mov_b32 s{S_NSEG}, 1")
    E.e(f"s_mov_b32 s{S_QB}, s{S_QB2}")
    E.e(f"s_mov_b32 s{S_T0}, s{S_T02}")
    E.e(f"s_mov_b32 s{S_N}, s{S_N2}")
    E.e(f"s_mov_b32 s{S_ACT}, s{S_ACT2}")
    for i in range(64):
        E.e(f"v_accvgpr_mov_b32 a{A_Q + i}, a{A_Q2 + i}")
    E.e("s_branch .Lseg")

    E.block("combine")
    E.label(".Lpublish")
    E.e("s_nop 7")
    E.e("s_nop 3")
    E.e(f"s_mov_b32 s{S_SOFF}, 0")
    for j in range(8):
        x = EP + 32 * (j % 2)
        for r_ in range(16):
            E.e(f"v_accvgpr_read_b32 v{x + r_}, a{A_O + 16 * j + r_}")
        for k in range(8):
            E.e(f"v_cvt_pk_bf16_f32 v{x + 16 + k}, v{x + 2 * k}, v{x + 2 * k + 1}")
        for gp in range(2):
            g = 2 * j + gp
            E.e(f"buffer_store_dwordx4 {vr(x + 16 + 4 * gp, 4)}, v{V_WSOFF}, s[20:23], s{S_SOFF} offen offset:{1024 * (g % 4)} sc1")
        if j % 2 == 1:
            E.e(f"s_add_u32 s{S_SOFF}, s{S_SOFF}, 0x1000")
    E.e(f"buffer_store_dword v{V_L}, v{V_WSOFF}, s[20:23], s{S_SOFF} offen sc1")
    E.e(f"buffer_store_dword v{V_M}, v{V_WSOFF}, s[20:23], s{S_SOFF} offen offset:4 sc1")
    E.e(f"s_mov_b32 s{S_PUB}, 1")
    if STAMP:
        stamp(5)
        for i in range(4):
            E.e(f"s_mov_b32 s{86 + 6 + i}, s{86 + 2 + i}")
    E.e("s_branch .Lswitch")
    E.label(".Lcombine")
    E.e(f"s_cmp_eq_u32 s{S_HAVE}, 1")
    E.e("s_cbranch_scc1 .Lready")
    flag_addr()
    E.label(".Lpoll")
    E.e(f"buffer_load_dword v{V_FLAG}, v{V_T2}, s[24:27], 0 offen sc0 sc1")
    E.e("s_waitcnt vmcnt(0)")
    flag_test()
    E.e("s_cbranch_scc1 .Lpolldone")
    E.e("s_sleep 8")
    E.e("s_branch .Lpoll")
    E.label(".Lpolldone")
    partner_loads()
    E.label(".Lready")
    E.e("s_waitcnt vmcnt(0)")
    E.e(f"v_max_f32 v{V_T2}, v{V_M}, v{V_OM}")
    E.e(f"v_sub_f32 v{V_T3}, v{V_M}, v{V_T2}")
    E.e(f"v_sub_f32 v{V_T1}, v{V_OM}, v{V_T2}")
    E.e(f"v_mul_f32 v{V_T3}, s{S_C}, v{V_T3}")
    E.e(f"v_mul_f32 v{V_T1}, s{S_C}, v{V_T1}")
    E.e(f"v_exp_f32 v{V_T3}, v{V_T3}")
    E.e(f"v_exp_f32 v{V_T1}, v{V_T1}")
    E.e("s_nop 0")
    E.e(f"v_mul_f32 v{V_L}, v{V_L}, v{V_T3}")
    E.e(f"v_fma_f32 v{V_L}, v{V_OL}, v{V_T1}, v{V_L}")
    E.e(f"v_rcp_f32 v{V_T0}, v{V_L}")
    E.e("s_nop 0")
    E.e(f"v_mul_f32 v{V_ALPHA}, v{V_T3}, v{V_T0}")
    E.e(f"v_mul_f32 v{V_FOT}, v{V_T1}, v{V_T0}")
    store_epilogue(True)
    stamp(5)
    E.e("s_branch .Lfin")

    for par in range(2):
        E.block(f"rare{par}")
        E.label(f".Lrare{par}")
        tile_max(par, V_T0, V_T1)
        E.e(f"v_max_f32 v{V_T0}, v{V_T0}, v{V_M}")
        E.e(f"v_sub_f32 v{V_T1}, v{V_M}, v{V_T0}")
        E.e(f"v_mul_f32 v{V_T1}, s{S_C}, v{V_T1}")
        E.e(f"v_exp_f32 v{V_ALPHA}, v{V_T1}")
        E.e(f"v_mov_b32 v{V_M}, v{V_T0}")
        E.e(f"v_mul_f32 v{V_NMC}, s{S_C}, v{V_M}")
        E.e(f"v_sub_f32 v{V_NMC}, 0, v{V_NMC}")
        E.e(f"v_mul_f32 v{V_L}, v{V_L}, v{V_ALPHA}")
        for i in range(0, 128, 4):
            for r_ in range(4):
                E.e(f"v_accvgpr_read_b32 v{TMP + 8 + r_}, a{A_O + i + r_}")
            for r_ in range(4):
                E.e(f"v_mul_f32 v{TMP + 8 + r_}, v{TMP + 8 + r_}, v{V_ALPHA}")
            for r_ in range(4):
                E.e(f"v_accvgpr_write_b32 a{A_O + i + r_}, v{TMP + 8 + r_}")
        run_ops(sm_stream(par, list(range(16)), first=True))
        E.e(f"v_add_f32 v{V_SA}, v{V_SA}, v{V_SB}")
        E.e(f"s_add_u32 s{S_RET}, s{S_RET}, 4")
        E.e(f"s_addc_u32 s{S_RET + 1}, s{S_RET + 1}, 0")
        E.e("s_nop 1")
        E.e(f"s_setpc_b64 s[{S_RET}:{S_RET + 1}]")

    E.block("end")
    E.label(".Lfin")
    if STAMP:
        E.e("s_waitcnt vmcnt(0)")
        stamp(10)
        stamp(11, True)
        E.e("s_lshl_b32 s64, s2, 2")
        E.e(f"s_add_u32 s64, s64, s{S_WAVE}")
        E.e("s_lshl_b32 s64, s64, 6")
        E.e("s_add_u32 s64, s64, 0x8000000")
        E.e("v_mov_b32 v1, s64")
        E.e("s_mov_b64 exec, 1")
        for i in range(12):
            E.e(f"v_mov_b32 v2, s{86 + i}")
            E.e(f"buffer_store_dword v2, v1, s[20:23], 0 offen offset:{4 * i}")
            E.e("s_nop 1")
        E.e("s_waitcnt vmcnt(0)")
        if STAMPD:
            E.e("s_and_b32 s64, s2, 0xffef")
            E.e(f"s_or_b32 s64, s64, s{S_WAVE}")
            E.e("s_cmp_eq_u32 s64, 0")
            E.e("s_cbranch_scc0 .Lnodbg")
            E.e("s_lshl_b32 s64, s2, 1")
            E.e("v_mov_b32 v1, s64")
            for i, sl in enumerate((2, 3, 4, 5, 10, 6, 7)):
                E.e(f"s_sub_u32 s65, s{86 + sl}, s86")
                E.e("v_mov_b32 v2, s65")
                E.e(f"buffer_store_dword v2, v1, s[24:27], 0 offen offset:{4 * i}")
                E.e("s_nop 1")
            E.e("s_sub_u32 s65, s97, s87")
            E.e("v_mov_b32 v2, s65")
            E.e("buffer_store_dword v2, v1, s[24:27], 0 offen offset:28")
            E.e("s_waitcnt vmcnt(0)")
            E.label(".Lnodbg")
        if STAMP2:
            E.e("s_mov_b64 exec, -1")
            E.e("s_lshl_b32 s64, s2, 2")
            E.e(f"s_add_u32 s64, s64, s{S_WAVE}")
            E.e("s_lshl_b32 s64, s64, 9")
            E.e("s_add_u32 s64, s64, 0x9000000")
            E.e(f"v_lshl_add_u32 v1, v{V_LANE}, 2, s64")
            E.e("buffer_store_dword v222, v1, s[20:23], 0 offen")
            E.e("buffer_store_dword v223, v1, s[20:23], 0 offen offset:256")
            E.e("s_waitcnt vmcnt(0)")
    E.label(".Lend")
    E.e("s_endpgm")


HEADER = """; Causal flash-attention forward, B=1 H=16 S=2048 D=256 bf16 (generated by work/gen.py)
; @launch grid=(256,1,1) block=(256,1,1) lds=163840
.amdgcn_target "amdgcn-amd-amdhsa--gfx950"
.text
.globl standalone__softmax_full_causal__prompt_kernel
.p2align 8
.type standalone__softmax_full_causal__prompt_kernel,@function
standalone__softmax_full_causal__prompt_kernel:
"""
FOOTER = """.section .rodata,"a"
.p2align 6
.amdhsa_kernel standalone__softmax_full_causal__prompt_kernel
  .amdhsa_next_free_vgpr 512
  .amdhsa_next_free_sgpr 102
  .amdhsa_accum_offset 256
  .amdhsa_group_segment_fixed_size 0
  .amdhsa_kernarg_size 48
  .amdhsa_user_sgpr_count 2
  .amdhsa_user_sgpr_kernarg_segment_ptr 1
  .amdhsa_system_sgpr_workgroup_id_x 1
.end_amdhsa_kernel
"""

if __name__ == "__main__":
    gen()
    for name in E.order:
        b = E.blocks[name]
        nb = []
        for l in b:
            if nb and l.endswith(" lds") and " m0," in nb[-1]:
                nb.append("s_nop 0")
            nb.append(l)
        E.blocks[name] = nb
    out = HEADER
    for name in E.order:
        out += f"; ---- {name}\n"
        for l in E.blocks[name]:
            out += ("" if l.endswith(":") else "    ") + l + "\n"
    out += FOOTER
    open(sys.argv[1], "w").write(out)
    import pickle
    pickle.dump((E.order, E.blocks), open("blocks.pkl", "wb"))
    n = sum(len(b) for b in E.blocks.values())
    print("instructions:", n, {k: len(v) for k, v in E.blocks.items()})
```

```python
import struct
import sys
import re

N0 = 18
N1 = 12
LK = 8
LV = 6
BAR_GAP = 28
BUDGET = 24
DMA_COST = 8
STAMP = 0
NODMA = 0
NOSM = 0
NOLDS = 0
FIXPTR = 0
BULK = 0
STAMP2 = 0
STAMPD = 0
CODEPF = 0
FINE = 0
QLDS = 1
EPLDS = 1
MF16 = 0
SWAP = 0
LITE = 1
PBIG = 2
LATE = 0
DMA_TAILPG = 1
DMA_STRIDE = 2
PFD = 3
for a in sys.argv[2:]:
    k, v = a.split("=")
    globals()[k] = int(v)


def f2u(x):
    return struct.unpack("<I", struct.pack("<f", x))[0]


C_SCALE = 0.0625 * 1.4426950408889634
THR = 65536.0
NEGBIG = 0xF149F2CA

def S_(buf, b):
    return 32 * buf + 16 * b
P0 = 64
KF = 96
VF = 128
KA = 160
VA = 168
KD = 172
VD = 180
TMP = 184
V_L = 200
V_M = 201
V_NMC = 202
V_SA = 203
V_SB = 204
V_QREL = 207
V_THR = 208
V_NEG = 209
V_LANE = 210
V_T0 = 211
V_T1 = 212
V_T2 = 213
V_QOFF = 214
V_WSOFF = 215
V_ALPHA = 216
V_T3 = 217
V_THRC = 218
V_PF = 219
V_PFD = 220
V_OL = 225
V_OM = 226
V_FLAG = 227
V_FOT = 228
EP = 0

A_O = 0
A_Q = 128
A_Q2 = 192

S_C = 28
S_WB = 29
S_KN = 30
S_VN = 31
S_ENDA = 32
S_STARTB = 33
S_ENDB = 34
S_OOB = 35
S_CNT = 36
S_KEY0 = 37
S_NSEG = 38
S_ACT = 39
S_RET = 40
S_MK = 42
S_QB = 50
S_T0 = 51
S_N = 52
S_QB2 = 53
S_T02 = 54
S_N2 = 55
S_ACT2 = 56
S_TMP = 57
S_TMP2 = 58
S_PID = 59
S_WAVE = 60
S_TMP3 = 61
S_SOFF = 62
S_SHIFT = 63
S_PFK = 66
S_PFV = 67
S_FIRST = 68
S_PUB = 69
S_HAVE = 70
S_QS = 71


class Em:
    def __init__(self):
        self.blocks = {}
        self.order = []
        self.cur = None
        self.ldsq = []
        self.pend = None

    def block(self, name):
        self.cur = []
        self.blocks[name] = self.cur
        self.order.append(name)

    def e(self, s):
        self.cur.append(s)

    def label(self, l):
        self.cur.append(l + ":")

    def ds(self, text, dst):
        self.e(text)
        self.ldsq.append(set(dst))
        assert len(self.ldsq) <= 15, "too many outstanding LDS ops"

    def need(self, regs):
        regs = set(regs)
        last = -1
        for i, d in enumerate(self.ldsq):
            if d & regs:
                last = i
        if last >= 0:
            n = len(self.ldsq) - 1 - last
            self.e(f"s_waitcnt lgkmcnt({n})")
            self.ldsq = self.ldsq[last + 1:]
            return True
        return False

    def lds_drain(self):
        self.ldsq = []

    def lds_drain_keep(self):
        pass


E = Em()


def vr(a, n):
    return f"v[{a}:{a + n - 1}]"


def ar(a, n):
    return f"a[{a}:{a + n - 1}]"


def kfrag(i):
    return KF + 4 * (i % 8)


def vfrag(i):
    return VF + 4 * (i % 8)


def k_read(i, slot):
    b, s = divmod(i, 16)
    off = slot * 32768 + b * 16384 + (s // 8) * 256
    d = kfrag(i)
    E.ds(f"ds_read_b128 {vr(d, 4)}, v{KA + s % 8} offset:{off}", range(d, d + 4))


def v_read(i, slot, half):
    s, j = divmod(i, 8)
    off = slot * 32768 + s * 8192 + (j // 4) * 256 + half * 4096
    d = vfrag(i) + 2 * half
    E.ds(f"ds_read_b64_tr_b16 {vr(d, 2)}, v{VA + j % 4} offset:{off}", range(d, d + 2))


def qk_mfma(i, sbuf):
    b, s = divmod(i, 16)
    regs = list(range(kfrag(i), kfrag(i) + 4))
    if i % 2 == 0 and i + 1 < 32:
        regs += list(range(kfrag(i + 1), kfrag(i + 1) + 4))
    E.need(regs)
    D = vr(S_(sbuf, b), 16)
    C = D if s > 0 else "0"
    if MF16:
        for hh in range(2):
            D = vr(S_(sbuf, b) + 4 * hh, 4)
            C = D if s > 0 else "0"
            t = f"v_mfma_f32_16x16x32_bf16 {D}, {vr(kfrag(i), 4)}, {ar(A_Q + 4 * s, 4)}, {C}"
            if hh == 0:
                E.e(t)
            else:
                E.pend = t
        return
    E.e(f"v_mfma_f32_32x32x16_bf16 {D}, {vr(kfrag(i), 4)}, {ar(A_Q + 4 * s, 4)}, {C}")


def pv_mfma(i, pbuf):
    s, j = divmod(i, 8)
    regs = list(range(vfrag(i), vfrag(i) + 4))
    if i % 2 == 0 and i + 1 < 32:
        regs += list(range(vfrag(i + 1), vfrag(i + 1) + 4))
    E.need(regs)
    D = ar(A_O + 16 * j, 16)
    if MF16:
        for hh in range(2):
            D = ar(A_O + 16 * j + 4 * hh, 4)
            t = f"v_mfma_f32_16x16x32_bf16 {D}, {vr(vfrag(i), 4)}, {vr(P0 + 16 * pbuf + 4 * s, 4)}, {D}"
            if hh == 0:
                E.e(t)
            else:
                E.pend = t
        return
    E.e(f"v_mfma_f32_32x32x16_bf16 {D}, {vr(vfrag(i), 4)}, {vr(P0 + 16 * pbuf + 4 * s, 4)}, {D}")


def dma_ops(kslot, vslot, pf=True):
    ops = []

    def m0(val):
        return (4, lambda: E.e(f"s_add_u32 m0, s{S_WB}, {val}"))

    def ld(voff, srd, soff, imm):
        if NODMA and E.cur is not E.blocks.get("setup"):
            return (0, lambda: None)
        return (DMA_COST, lambda: E.e(f"buffer_load_dwordx4 v{voff}, s[{srd}:{srd + 3}], s{soff} offen offset:{imm} lds"))

    for g in range(2):
        ops.append(m0(65536 + vslot * 32768 + 4096 * g))
        for jj in range(4):
            ops.append(ld(VD + 2 * g + (jj % 2), 12, S_VN, 1024 * jj))
    for g in range(2):
        ops.append(m0(kslot * 32768 + 4096 * g))
        for jj in range(4):
            ops.append(ld(KD + 4 * g + jj, 8, S_KN, 1024 * jj))
    ops.append((4, lambda: E.e(f"s_mov_b32 s{S_VN}, s{S_KN}")))
    ops.append(upd(S_KN))
    if pf and PFD:
        ops += pf_ops()
    return ops


def upd(sp):
    def f():
        if FIXPTR:
            return
        E.e(f"s_add_u32 s{sp}, s{sp}, 0x8000")
        E.e(f"s_cmp_eq_u32 s{sp}, s{S_ENDA}")
        E.e(f"s_cselect_b32 s{sp}, s{S_STARTB}, s{sp}")
        E.e(f"s_cmp_eq_u32 s{sp}, s{S_ENDB}")
        E.e(f"s_cselect_b32 s{sp}, s{S_OOB}, s{sp}")
    return (20, f)


def pf_ops():
    return [(DMA_COST, lambda: E.e(f"buffer_load_dword v{V_PFD}, v{V_PF}, s[12:15], s{S_PFK} offen")),
            (DMA_COST, lambda: E.e(f"buffer_load_dword v{V_PFD + 1}, v{V_PF}, s[8:11], s{S_PFK} offen")),
            (4, lambda: E.e(f"s_add_u32 s{S_PFK}, s{S_PFK}, 0x8000"))]


def sm_stream(sbuf, pairs, first):
    ops = []
    n = len(pairs)
    st = {"first": first}

    def T(idx):
        return TMP + 2 * (idx % 4)

    def F(idx):
        k = pairs[idx]
        r = 32 * sbuf + 2 * k
        t = T(idx)
        ops.append((4, lambda: E.e(f"v_fma_f32 v{t}, v{r}, s{S_C}, v{V_NMC}")))
        ops.append((4, lambda: E.e(f"v_fma_f32 v{t + 1}, v{r + 1}, s{S_C}, v{V_NMC}")))

    def X(idx):
        t = T(idx)
        ops.append((8, lambda: E.e(f"v_exp_f32 v{t}, v{t}")))
        ops.append((8, lambda: E.e(f"v_exp_f32 v{t + 1}, v{t + 1}")))

    def A(idx):
        k = pairs[idx]
        t = T(idx)
        p = P0 + 16 * sbuf + k
        if st["first"]:
            st["first"] = False
            ops.append((4, lambda: E.e(f"v_mov_b32 v{V_SA}, v{t}")))
            ops.append((4, lambda: E.e(f"v_mov_b32 v{V_SB}, v{t + 1}")))
        else:
            ops.append((4, lambda: E.e(f"v_add_f32 v{V_SA}, v{V_SA}, v{t}")))
            ops.append((4, lambda: E.e(f"v_add_f32 v{V_SB}, v{V_SB}, v{t + 1}")))
        ops.append((4, lambda: E.e(f"v_cvt_pk_bf16_f32 v{p}, v{t}, v{t + 1}")))

    for i in range(n + 2):
        if i < n:
            F(i)
        if 1 <= i <= n:
            X(i - 1)
        if i >= 2:
            A(i - 2)
    if NOSM:
        return []
    return ops


def mask_ops(sbuf, b):
    ops = []
    for q in range(4):
        for r4 in range(4):
            r = 4 * q + r4
            o = 32 * b + 8 * q + r4
            ops.append((4, lambda o=o, r4=r4: E.e(f"v_cmp_lt_i32 s[{S_MK + 2 * r4}:{S_MK + 2 * r4 + 1}], v{V_THR}, {o}")))
        for r4 in range(4):
            r = 4 * q + r4
            reg = S_(sbuf, b) + r
            ops.append((4, lambda reg=reg, r4=r4: E.e(f"v_cndmask_b32 v{reg}, v{reg}, v{V_NEG}, s[{S_MK + 2 * r4}:{S_MK + 2 * r4 + 1}]")))
    return ops


def run_ops(ops):
    for c, f in ops:
        f()


def schedule(mf, fixed, stream, first_gap, last_gap):
    n = len(mf)
    free = []
    for g in range(n):
        c = sum(x[0] for x in fixed[g]) + 2
        free.append(max(0, BUDGET - c) if first_gap <= g <= last_gap else 0)
    T = sum(x[0] for x in stream)
    F = sum(free)
    scale = T / F if F > 0 else 0
    credit = 0.0
    si = 0
    for g in range(n):
        mf[g]()
        ops = list(fixed[g])
        if first_gap <= g <= last_gap:
            credit += free[g] * scale
            while si < len(stream) and (credit >= stream[si][0] * 0.5 or g == last_gap):
                credit -= stream[si][0]
                ops.append(stream[si])
                si += 1
        tot = sum(o[0] for o in ops)
        acc = 0
        for o in ops:
            if E.pend and acc >= tot / 2:
                E.e(E.pend); E.pend = None
            o[1]()
            acc += o[0]
        if E.pend:
            E.e(E.pend); E.pend = None
    assert si == len(stream)


_rare_sites = []


def check_and_accumulate(par, tag):
    E.e(f"v_add_f32 v{V_SA}, v{V_SA}, v{V_SB}")
    E.e(f"v_cmp_nle_f32 vcc, v{V_SA}, v{V_THRC}")
    E.e("s_nop 3")
    E.e(f"s_cbranch_vccz .Lok_{tag}")
    E.e(f"s_getpc_b64 s[{S_RET}:{S_RET + 1}]")
    E.e(f"s_branch .Lrare{par}")
    E.label(f".Lok_{tag}")
    E.e(f"v_add_f32 v{V_L}, v{V_L}, v{V_SA}")


def b_tail_fixed(fixed, kslot_next, dma):
    def bar():
        if STAMP2:
            E.e("s_waitcnt lgkmcnt(0)")
            E.e("s_memtime s[98:99]")
            E.e("s_waitcnt lgkmcnt(0)")
            E.e(f"v_cmp_eq_u32 vcc, s96, v{V_LANE}")
            E.e("v_mov_b32 v224, s98")
            E.e("s_nop 1")
            E.e("v_cndmask_b32 v222, v222, v224, vcc")
        E.e(f"s_waitcnt vmcnt({2 if PFD else 0}) lgkmcnt(0)")
        E.lds_drain()
        E.e("s_barrier")
        if STAMP2:
            E.e("s_memtime s[98:99]")
            E.e("s_waitcnt lgkmcnt(0)")
            E.e("v_mov_b32 v224, s98")
            E.e("v_cndmask_b32 v223, v223, v224, vcc")
            E.e("s_add_u32 s96, s96, 1")
    fixed[BAR_GAP].append((8, bar))
    ng = 32 - BAR_GAP
    idx = 0
    per = (LK + ng - 1) // ng
    for g in range(BAR_GAP, 32):
        for _ in range(per):
            if idx < LK:
                fixed[g].append((4, lambda i=idx: k_read(i, kslot_next)))
                idx += 1
    nd = 0
    for g in range(BAR_GAP, 32):
        for _ in range(DMA_TAILPG):
            if dma:
                fixed[g].append(dma.pop(0))
    return dma


NDMA_TAIL = DMA_TAILPG * (32 - BAR_GAP)


def phase_a(par, dma_rest, with_mfma=True, tag=""):
    nb = 1 - par
    mf = []
    fixed = [[] for _ in range(32)]
    for i in range(32):
        if with_mfma:
            mf.append(lambda i=i: qk_mfma(i, nb))
            if i + LK < 32:
                fixed[i].append((4, lambda i=i: k_read(i + LK, nb)))
        else:
            mf.append(lambda: None)
    g = 0
    for op in dma_rest:
        fixed[g].append(op)
        g += DMA_STRIDE if op[0] > 4 else 0
        g = min(g, 31)
    g0 = 32 - LV
    for k in range(LV):
        fixed[g0 + k - 1].append((4, lambda k=k: v_read(k, par, 0)))
        fixed[g0 + k - 1].append((4, lambda k=k: v_read(k, par, 1)))
    stream = sm_stream(par, list(range(N1 // 2, 16)), first=(N1 == 0))
    schedule(mf, fixed, stream, 0, 29)
    check_and_accumulate(par, tag)


def phase_b(par, masked, last, nosm=False):
    nb = 1 - par
    mf = [lambda i=i: pv_mfma(i, par) for i in range(32)]
    fixed = [[] for _ in range(32)]
    for i in range(32):
        if i + LV < 32:
            fixed[i].append((4, lambda i=i: v_read(i + LV, par, 0)))
            fixed[i].append((4, lambda i=i: v_read(i + LV, par, 1)))
    stream = []
    dma = []
    if not last:
        if masked and not nosm:
            stream += mask_ops(nb, 0)
        if not nosm:
            stream += sm_stream(nb, list(range(0, N1 // 2)), first=True)
        if masked and not nosm:
            stream += mask_ops(nb, 1)
        dma = dma_ops(nb, par)
        dma = b_tail_fixed(fixed, par, dma)
    schedule(mf, fixed, stream, 1 if not masked else 1, BAR_GAP - 1)
    return dma


def set_thr(off_tiles_from_end):
    E.e(f"s_add_u32 s{S_TMP}, s{S_T0}, s{S_N}")
    E.e(f"s_sub_u32 s{S_TMP}, s{S_TMP}, {off_tiles_from_end}")
    E.e(f"s_lshl_b32 s{S_TMP}, s{S_TMP}, 6")
    E.e(f"v_subrev_u32 v{V_THR}, s{S_TMP}, v{V_QREL}")


def iteration(par, masked, tag, dma_in):
    phase_a(par, dma_in, True, tag)
    return phase_b(par, masked, False)


def tile_max(sbuf, dst, t1):
    base = 32 * sbuf
    E.e(f"v_max3_f32 v{dst}, v{base}, v{base + 1}, v{base + 2}")
    E.e(f"v_max3_f32 v{t1}, v{base + 3}, v{base + 4}, v{base + 5}")
    r = 6
    acc = [dst, t1]
    k = 0
    while r + 1 < 32:
        E.e(f"v_max3_f32 v{acc[k]}, v{acc[k]}, v{base + r}, v{base + r + 1}")
        k ^= 1
        r += 2
    E.e(f"v_max_f32 v{dst}, v{dst}, v{t1}")
    E.e(f"v_mov_b32 v{t1}, v{dst}")
    E.e("s_nop 1")
    E.e(f"v_permlane32_swap_b32 v{dst}, v{t1}")
    E.e(f"v_max_f32 v{dst}, v{dst}, v{t1}")


def flag_addr():
    E.e(f"s_lshl_b32 s{S_TMP}, s{S_PID}, 2")
    E.e(f"s_add_u32 s{S_TMP}, s{S_TMP}, s{S_WAVE}")
    E.e(f"s_and_b32 s{S_SHIFT}, s{S_TMP}, 31")
    E.e(f"s_lshr_b32 s{S_TMP}, s{S_TMP}, 5")
    E.e(f"s_lshl_b32 s{S_TMP}, s{S_TMP}, 2")
    E.e(f"s_add_u32 s{S_TMP}, s{S_TMP}, 64")
    E.e(f"v_mov_b32 v{V_T2}, s{S_TMP}")
    E.e(f"s_lshl_b32 s{S_TMP2}, 1, s{S_SHIFT}")
    E.e(f"v_mov_b32 v{V_T3}, s{S_TMP2}")


def flag_test():
    E.e(f"v_readfirstlane_b32 s{S_TMP3}, v{V_FLAG}")
    E.e("s_nop 3")
    E.e(f"s_lshr_b32 s{S_TMP3}, s{S_TMP3}, s{S_SHIFT}")
    E.e(f"s_and_b32 s{S_TMP3}, s{S_TMP3}, 1")
    E.e(f"s_cmp_lg_u32 s{S_TMP3}, 0")


def partner_loads():
    E.e(f"s_mov_b32 s{S_SOFF}, 0")
    for g in range(16):
        E.e(f"buffer_load_dwordx4 {ar(A_Q2 + 4 * g, 4)}, v{V_WSOFF}, s[20:23], s{S_SOFF} offen offset:{1024 * (g % 4)} sc1")
        if g % 4 == 3:
            E.e(f"s_add_u32 s{S_SOFF}, s{S_SOFF}, 0x1000")
    E.e(f"buffer_load_dword v{V_OL}, v{V_WSOFF}, s[20:23], s{S_SOFF} offen sc1")
    E.e(f"buffer_load_dword v{V_OM}, v{V_WSOFF}, s[20:23], s{S_SOFF} offen offset:4 sc1")


def store_epilogue(partner):
    WA = 96
    RA = 104
    GO = 108
    RB = 112
    if EPLDS:
        L = V_LANE
        E.e(f"s_add_u32 s{S_TMP}, s{S_WB}, 0x20000")
        E.e(f"v_and_b32 v{V_T0}, 31, v{L}")
        E.e(f"v_lshrrev_b32 v{V_T1}, 5, v{L}")
        E.e(f"v_and_b32 v{V_T2}, 15, v{L}")
        E.e(f"v_xor_b32 v{V_T2}, v{V_T2}, v{V_T1}")
        E.e(f"v_lshl_add_u32 v{V_T0}, v{V_T0}, 8, s{S_TMP}")
        for k in range(8):
            E.e(f"v_xor_b32 v{WA + k}, {2 * k}, v{V_T2}")
            E.e(f"v_lshl_add_u32 v{WA + k}, v{WA + k}, 4, v{V_T0}")
        E.e(f"v_lshrrev_b32 v{V_T1}, 4, v{L}")
        E.e(f"v_and_b32 v{V_T2}, 15, v{L}")
        for i in range(4):
            E.e(f"v_add_u32 v{RA + i}, {4 * i}, v{V_T1}")
            E.e(f"v_xor_b32 v{V_T3}, v{RA + i}, v{V_T2}")
            E.e(f"v_lshlrev_b32 v{V_T3}, 4, v{V_T3}")
            E.e(f"v_lshl_add_u32 v{RA + i}, v{RA + i}, 8, v{V_T3}")
            E.e(f"v_add_u32 v{RA + i}, s{S_TMP}, v{RA + i}")
        E.e(f"s_lshl_b32 s{S_TMP2}, s{S_WAVE}, 14")
        E.e(f"v_lshlrev_b32 v{GO}, 9, v{V_T1}")
        E.e(f"v_lshl_add_u32 v{GO}, v{V_T2}, 4, v{GO}")
        E.e(f"v_add_u32 v{GO}, s{S_TMP2}, v{GO}")
    for j in range(8):
        x = EP + 32 * (j % 2)
        for r_ in range(16):
            E.e(f"v_accvgpr_read_b32 v{x + r_}, a{A_O + 16 * j + r_}")
        if partner:
            for k in range(8):
                E.e(f"v_accvgpr_read_b32 v{x + 16 + k}, a{A_Q2 + 8 * j + k}")
        for r_ in range(16):
            E.e(f"v_mul_f32 v{x + r_}, v{x + r_}, v{V_ALPHA}")
        if partner:
            for k in range(8):
                E.e(f"v_lshlrev_b32 v{TMP + k}, 16, v{x + 16 + k}")
                E.e(f"v_and_b32 v{TMP + 8 + k}, 0xffff0000, v{x + 16 + k}")
            for k in range(8):
                E.e(f"v_fma_f32 v{x + 2 * k}, v{TMP + k}, v{V_FOT}, v{x + 2 * k}")
                E.e(f"v_fma_f32 v{x + 2 * k + 1}, v{TMP + 8 + k}, v{V_FOT}, v{x + 2 * k + 1}")
        for k in range(8):
            E.e(f"v_cvt_pk_bf16_f32 v{x + 16 + k}, v{x + 2 * k}, v{x + 2 * k + 1}")
        E.e("s_nop 1")
        for gp in range(2):
            y = x + 16 + 4 * gp
            E.e(f"v_permlane32_swap_b32 v{y}, v{y + 2}")
            E.e(f"v_permlane32_swap_b32 v{y + 1}, v{y + 3}")
        for gp in range(2):
            y = x + 16 + 4 * gp
            if EPLDS:
                E.e(f"ds_write_b128 v{WA + 2 * (j % 4) + gp}, {vr(y, 4)}")
            else:
                E.e(f"buffer_store_dwordx4 {vr(y, 4)}, v{V_QOFF}, s[16:19], s{S_QB} offen offset:{64 * j + 32 * gp}")
        if EPLDS and j % 4 == 3:
            hh = j // 4
            for i in range(8):
                E.e(f"ds_read_b128 {vr(RB + 4 * i, 4)}, v{RA + i % 4} offset:{4096 * (i // 4)}")
            E.e(f"s_mov_b32 s{S_SOFF}, s{S_QB}")
            for i in range(8):
                E.e(f"s_waitcnt lgkmcnt({7 - i})")
                E.e(f"buffer_store_dwordx4 {vr(RB + 4 * i, 4)}, v{GO}, s[16:19], s{S_SOFF} offen offset:{256 * hh} sc0 sc1")
                if i < 7:
                    E.e(f"s_add_u32 s{S_SOFF}, s{S_SOFF}, 0x800")


def stamp(i, real=False):
    if not STAMP:
        return
    assert not E.ldsq or True
    E.e("s_memrealtime s[98:99]" if real else "s_memtime s[98:99]")
    E.e("s_waitcnt lgkmcnt(0)")
    E.lds_drain_keep()
    E.e(f"s_mov_b32 s{86 + i}, s98")


def gen():
    E.block("setup")
    E.e("s_cmp_ge_u32 s2, 256")
    E.e("s_cbranch_scc1 .Lend")
    stamp(0)
    stamp(1, True)
    if STAMP2:
        E.e("s_mov_b32 s96, 0")
        E.e("v_mov_b32 v222, 0")
        E.e("v_mov_b32 v223, 0")
    E.e("s_load_dwordx4 s[4:7], s[0:1], 0")
    E.e("s_load_dwordx4 s[8:11], s[0:1], 16")
    E.e("s_load_dwordx4 s[12:15], s[0:1], 32")
    E.e(f"v_lshrrev_b32 v{V_T0}, 6, v0")
    E.e(f"v_and_b32 v{V_LANE}, 63, v0")
    E.e("s_nop 0")
    E.e(f"v_readfirstlane_b32 s{S_WAVE}, v{V_T0}")
    E.e("s_and_b32 s64, s2, 7")
    E.e("s_lshr_b32 s65, s2, 3")
    E.e("s_and_b32 s66, s65, 1")
    E.e("s_lshl_b32 s64, s64, 1")
    E.e("s_add_u32 s64, s64, s66")
    E.e("s_lshr_b32 s65, s65, 1")
    E.e("s_and_b32 s67, s65, 1")
    E.e("s_lshl_b32 s85, s65, 16")
    E.e("s_mov_b32 s97, s85")
    E.e("s_lshr_b32 s65, s65, 1")
    E.e(f"s_lshl_b32 s{S_PID}, s64, 3")
    E.e(f"s_add_u32 s{S_PID}, s{S_PID}, s65")
    E.e("s_lshl_b32 s68, s64, 20")
    E.e("s_waitcnt lgkmcnt(0)")
    if FINE == 2:
        stamp(6)
    E.e("s_mov_b32 s70, s6"); E.e("s_mov_b32 s71, s7")
    E.e("s_mov_b32 s72, s8"); E.e("s_mov_b32 s73, s9")
    E.e("s_mov_b32 s74, s10"); E.e("s_mov_b32 s75, s11")
    E.e("s_mov_b32 s76, s12"); E.e("s_mov_b32 s77, s13")
    E.e("s_mov_b32 s78, s14"); E.e("s_mov_b32 s79, s15")
    for (srd, lo, hi) in ((4, 4, 5), (8, 70, 71), (12, 72, 73), (16, 74, 75)):
        E.e(f"s_add_u32 s{srd}, s{lo}, s68")
        E.e(f"s_addc_u32 s{srd + 1}, s{hi}, 0")
        E.e(f"s_and_b32 s{srd + 1}, s{srd + 1}, 0xffff")
        E.e(f"s_mov_b32 s{srd + 2}, 0x100000")
        E.e(f"s_mov_b32 s{srd + 3}, 0x00020000")
    E.e("s_mov_b32 s20, s78"); E.e("s_and_b32 s21, s79, 0xffff")
    E.e("s_mov_b32 s22, 0x10000000"); E.e("s_mov_b32 s23, 0x00020000")
    E.e("s_mov_b32 s24, s76"); E.e("s_and_b32 s25, s77, 0xffff")
    E.e("s_mov_b32 s26, 256"); E.e("s_mov_b32 s27, 0x00020000")
    E.e(f"s_mov_b32 s{S_C}, {f2u(C_SCALE):#x}")
    E.e(f"s_lshl_b32 s{S_WB}, s{S_WAVE}, 13")
    E.e(f"s_mov_b32 s{S_OOB}, 0x40000000")
    E.e("s_lshl_b32 s69, s65, 1")
    E.e("s_sub_u32 s80, 32, s69")
    E.e("s_add_u32 s81, s69, 2")
    E.e("s_sub_u32 s82, 15, s65")
    E.e("s_lshl_b32 s82, s82, 16")
    E.e("s_lshl_b32 s83, s65, 16")
    E.e(f"s_cmp_lt_u32 s65, {PBIG}")
    E.e(f"s_cselect_b32 s84, {N0 + 2}, {N0}")
    E.e(f"s_min_u32 s84, s80, s84")
    E.e("s_sub_u32 s85, s80, s84")
    E.e("s_cmp_eq_u32 s67, 0")
    E.e("s_cbranch_scc0 .Lwg1")
    E.e(f"s_mov_b32 s{S_QB}, s82")
    E.e(f"s_mov_b32 s{S_T0}, 0")
    E.e(f"s_mov_b32 s{S_N}, s84")
    E.e(f"s_mov_b32 s{S_NSEG}, 1")
    E.e(f"s_cmp_lg_u32 s85, 0")
    E.e(f"s_cselect_b32 s{S_ACT}, {3 if SWAP else 1}, 0")
    E.e(f"s_mov_b32 s{S_ENDA}, 1")
    E.e(f"s_mov_b32 s{S_STARTB}, 1")
    E.e(f"s_lshl_b32 s{S_ENDB}, s84, 15")
    E.e("s_branch .Lsegdone")
    E.label(".Lwg1")
    E.e(f"s_cmp_lg_u32 s85, 0")
    E.e(f"s_cselect_b32 s{S_NSEG}, 2, 1")
    E.e(f"s_cbranch_scc0 .Lwg1_single")
    if SWAP:
        E.e(f"s_mov_b32 s{S_QB}, s83")
        E.e(f"s_mov_b32 s{S_T0}, 0")
        E.e(f"s_mov_b32 s{S_N}, s81")
        E.e(f"s_mov_b32 s{S_ACT}, 0")
        E.e(f"s_mov_b32 s{S_QB2}, s82")
        E.e(f"s_mov_b32 s{S_T02}, s84")
        E.e(f"s_mov_b32 s{S_N2}, s85")
        E.e(f"s_mov_b32 s{S_ACT2}, 1")
        E.e(f"s_lshl_b32 s{S_ENDA}, s81, 15")
        E.e(f"s_lshl_b32 s{S_STARTB}, s84, 15")
        E.e(f"s_lshl_b32 s{S_ENDB}, s80, 15")
    else:
        E.e(f"s_mov_b32 s{S_QB}, s82")
        E.e(f"s_mov_b32 s{S_T0}, s84")
        E.e(f"s_mov_b32 s{S_N}, s85")
        E.e(f"s_mov_b32 s{S_ACT}, 2")
        E.e(f"s_mov_b32 s{S_QB2}, s83")
        E.e(f"s_mov_b32 s{S_T02}, 0")
        E.e(f"s_mov_b32 s{S_N2}, s81")
        E.e(f"s_mov_b32 s{S_ACT2}, 0")
        E.e(f"s_lshl_b32 s{S_ENDA}, s80, 15")
        E.e(f"s_mov_b32 s{S_STARTB}, 0")
        E.e(f"s_lshl_b32 s{S_ENDB}, s81, 15")
    E.e("s_branch .Lsegdone")
    E.label(".Lwg1_single")
    E.e(f"s_mov_b32 s{S_QB}, s83")
    E.e(f"s_mov_b32 s{S_T0}, 0")
    E.e(f"s_mov_b32 s{S_N}, s81")
    E.e(f"s_mov_b32 s{S_ACT}, 0")
    E.e(f"s_mov_b32 s{S_ENDA}, 1")
    E.e(f"s_mov_b32 s{S_STARTB}, 1")
    E.e(f"s_lshl_b32 s{S_ENDB}, s81, 15")
    E.label(".Lsegdone")
    L = V_LANE
    E.e(f"v_and_b32 v{V_T0}, 31, v{L}")
    E.e(f"v_lshrrev_b32 v{V_T1}, 5, v{L}")
    E.e(f"s_lshl_b32 s{S_TMP}, s{S_WAVE}, 5")
    E.e(f"v_add_u32 v{V_T2}, s{S_TMP}, v{V_T0}")
    E.e(f"v_lshlrev_b32 v{V_QOFF}, 9, v{V_T2}")
    E.e(f"v_lshl_add_u32 v{V_QOFF}, v{V_T1}, 4, v{V_QOFF}")
    E.e(f"v_and_b32 v{V_T3}, 15, v{L}")
    for j in range(8):
        E.e(f"v_add_u32 v{KA + j}, {2 * j}, v{V_T1}")
        E.e(f"v_xor_b32 v{KA + j}, v{KA + j}, v{V_T3}")
        E.e(f"v_lshlrev_b32 v{KA + j}, 4, v{KA + j}")
        E.e(f"v_lshl_add_u32 v{KA + j}, v{V_T0}, 9, v{KA + j}")
    E.e(f"v_bfe_u32 v{TMP}, v{L}, 2, 2")
    E.e(f"v_and_b32 v{TMP + 1}, 3, v{L}")
    E.e(f"v_bfe_u32 v{TMP + 2}, v{L}, 4, 1")
    E.e(f"v_lshl_add_u32 v{TMP + 3}, v{V_T1}, 2, v{TMP}")
    E.e(f"v_lshlrev_b32 v{TMP + 3}, 9, v{TMP + 3}")
    E.e(f"v_lshl_add_u32 v{TMP + 3}, v{TMP + 2}, 5, v{TMP + 3}")
    E.e(f"v_lshl_add_u32 v{TMP + 3}, v{TMP + 1}, 3, v{TMP + 3}")
    E.e(f"v_add_u32 v{TMP + 3}, 0x10000, v{TMP + 3}")
    for i in range(4):
        E.e(f"v_xor_b32 v{VA + i}, {i}, v{TMP}")
        E.e(f"v_lshl_add_u32 v{VA + i}, v{VA + i}, 6, v{TMP + 3}")
    E.e(f"v_lshl_add_u32 v{TMP + 4}, v{V_T1}, 9, s{S_WB}")
    for j in range(8):
        E.e(f"v_add_u32 v{KD + j}, {2 * j % 16}, v{V_T1}")
        E.e(f"v_xor_b32 v{KD + j}, v{KD + j}, v{V_T0}")
        E.e(f"v_lshl_add_u32 v{KD + j}, v{KD + j}, 4, v{TMP + 4}")
        if j >= 4:
            E.e(f"v_add_u32 v{KD + j}, 0x1000, v{KD + j}")
    for g in range(2):
        for o in range(2):
            d = VD + 2 * g + o
            E.e(f"v_add_u32 v{d}, {2 * o}, v{V_T1}")
            E.e(f"v_lshlrev_b32 v{d}, 2, v{d}")
            E.e(f"v_xor_b32 v{d}, v{d}, v{V_T0}")
            E.e(f"v_lshl_add_u32 v{d}, v{d}, 4, v{TMP + 4}")
            if g:
                E.e(f"v_add_u32 v{d}, 0x1000, v{d}")
    E.e(f"v_mov_b32 v{V_NEG}, {NEGBIG:#x}")
    E.e(f"v_mov_b32 v{V_THRC}, {f2u(THR):#x}")
    E.e(f"s_mul_i32 s{S_TMP}, s{S_WAVE}, 0x9000")
    E.e(f"s_lshl_b32 s{S_TMP2}, s{S_PID}, 18")
    E.e(f"s_add_u32 s{S_TMP}, s{S_TMP}, s{S_TMP2}")
    E.e(f"v_lshl_add_u32 v{V_WSOFF}, v{L}, 4, s{S_TMP}")
    E.e(f"v_and_b32 v{V_PF}, 7, v{L}")
    E.e(f"s_lshl_b32 s{S_TMP}, s65, 12")
    E.e(f"s_lshl_b32 s{S_TMP2}, s{S_WAVE}, 10")
    E.e(f"s_add_u32 s{S_TMP}, s{S_TMP}, s{S_TMP2}")
    E.e(f"v_lshl_add_u32 v{V_PF}, v{V_PF}, 7, s{S_TMP}")
    E.e(f"s_lshl_b32 s{S_KN}, s{S_T0}, 15")
    E.e(f"s_mov_b32 s{S_VN}, s{S_KN}")
    E.e(f"s_mov_b32 s{S_FIRST}, 1")
    E.e(f"s_mov_b32 s{S_PUB}, 0")
    E.e(f"s_mov_b32 s{S_HAVE}, 0")
    if CODEPF:
        E.e("s_getpc_b64 s[90:91]")
        E.label(".Lpc0")
        E.e(f"v_lshlrev_b32 v{TMP}, 7, v{L}")
        E.e(f"v_mov_b32 v{TMP + 1}, 0")
        E.e(f"v_add_co_u32 v{TMP}, vcc, s90, v{TMP}")
        E.e("s_nop 1")
        E.e(f"v_mov_b32 v{TMP + 2}, s91")
        E.e(f"v_addc_co_u32 v{TMP + 1}, vcc, v{TMP + 2}, v{TMP + 1}, vcc")
        for k in range(CODEPF):
            E.e(f"global_load_dword v{V_PFD}, v[{TMP}:{TMP + 1}], off")
            E.e(f"v_add_co_u32 v{TMP}, vcc, 0x2000, v{TMP}")
            E.e("s_nop 1")
            E.e(f"v_addc_co_u32 v{TMP + 1}, vcc, 0, v{TMP + 1}, vcc")
    if FINE == 2:
        stamp(7)
    if QLDS:
        E.e(f"s_lshl_b32 s{S_TMP}, s{S_WAVE}, 14")
        E.e(f"s_cmp_lt_u32 s{S_WAVE}, 2")
        E.e(f"s_cselect_b32 s{S_TMP2}, 2, 1")
        E.e(f"s_lshl_b32 s{S_TMP2}, s{S_TMP2}, 16")
        E.e(f"s_add_u32 s{S_QS}, s{S_TMP}, s{S_TMP2}")
        E.e(f"s_add_u32 s{S_TMP}, s{S_QB}, s{S_WB}")
        for hf in range(2):
            for g in range(2):
                E.e(f"s_add_u32 m0, s{S_QS}, {8192 * hf + 4096 * g}")
                E.e("s_nop 0")
                for jj in range(4):
                    E.e(f"buffer_load_dwordx4 v{KD + 4 * g + jj}, s[4:7], s{S_TMP} offen offset:{1024 * jj} lds")
            if hf == 0:
                E.e(f"s_add_u32 s{S_TMP}, s{S_TMP}, 0x2000")
    else:
        for s_ in range(16):
            E.e(f"buffer_load_dwordx4 {ar(A_Q + 4 * s_, 4)}, v{V_QOFF}, s[4:7], s{S_QB} offen offset:{32 * s_}")
    if FINE == 2:
        stamp(8)
    d0 = dma_ops(0, 0, pf=False)
    run_ops(d0[10:])
    if FINE == 2:
        stamp(9)
    def later():
        run_ops(d0[:10])
        d1 = dma_ops(1, 1, pf=False)[10:]
        run_ops(d1)
        if PFD:
            E.e(f"s_mul_i32 s{S_PFK}, s67, {N0 * 32768}")
            E.e(f"s_add_u32 s{S_PFK}, s{S_PFK}, 0x8000")
            for _ in range(PFD):
                run_ops(pf_ops())
    nyoung = 0
    if not LATE:
        later()
        nyoung = 16 + 2 * PFD
    if STAMP and FINE == 1:
        stamp(6)
        E.e(f"s_waitcnt vmcnt({nyoung + 8 + 15})")
        stamp(7)
        E.e(f"s_waitcnt vmcnt({nyoung + 8})")
        stamp(8)
        E.e(f"s_waitcnt vmcnt({nyoung})")
        stamp(9)
    E.e(f"s_waitcnt vmcnt({nyoung})")
    E.e("s_barrier")
    if LATE:
        later()
    if QLDS:
        for j in range(8):
            E.e(f"v_add_u32 v{TMP + j}, s{S_QS}, v{KA + j}")
        for s_ in range(16):
            E.e(f"ds_read_b128 {ar(A_Q + 4 * s_, 4)}, v{TMP + s_ % 8} offset:{256 * (s_ // 8)}")
            if s_ == 7:
                E.e("s_waitcnt lgkmcnt(0)")
        E.e("s_waitcnt lgkmcnt(0)")

    E.block("prologue")
    E.label(".Lseg")
    E.e(f"s_lshr_b32 s{S_TMP}, s{S_QB}, 9")
    E.e(f"v_lshrrev_b32 v{V_T0}, 9, v{V_QOFF}")
    E.e(f"v_add_u32 v{V_QREL}, s{S_TMP}, v{V_T0}")
    E.e(f"v_lshrrev_b32 v{V_T1}, 5, v{V_LANE}")
    E.e(f"v_lshlrev_b32 v{V_T1}, 2, v{V_T1}")
    E.e(f"v_sub_u32 v{V_QREL}, v{V_QREL}, v{V_T1}")
    for i in range(128):
        E.e(f"v_accvgpr_write_b32 a{A_O + i}, 0")
    E.e(f"v_mov_b32 v{V_L}, 0")
    stamp(2)
    for i in range(LK):
        k_read(i, 0)
    for i in range(32):
        qk_mfma(i, 0)
        if E.pend:
            E.e(E.pend); E.pend = None
        if i + LK < 32:
            k_read(i + LK, 0)
    E.e(f"s_lshl_b32 s{S_TMP}, s{S_T0}, 6")
    E.e(f"v_subrev_u32 v{V_THR}, s{S_TMP}, v{V_QREL}")
    E.e("s_nop 7")
    E.e("s_nop 3")
    run_ops(mask_ops(0, 0))
    run_ops(mask_ops(0, 1))
    tile_max(0, V_M, V_T0)
    E.e(f"v_mul_f32 v{V_NMC}, s{S_C}, v{V_M}")
    E.e(f"v_sub_f32 v{V_NMC}, 0, v{V_NMC}")
    run_ops(sm_stream(0, list(range(0, N1 // 2)), first=True))
    E.e(f"s_cmp_eq_u32 s{S_FIRST}, 1")
    E.e("s_cbranch_scc1 .Lpro1")
    E.e("s_waitcnt vmcnt(0)")
    E.e(f"s_cmp_eq_u32 s{S_PUB}, 1")
    E.e("s_cbranch_scc0 .Lpro1")
    flag_addr()
    E.e("s_mov_b64 exec, 1")
    E.e(f"buffer_atomic_or v{V_T3}, v{V_T2}, s[24:27], 0 offen sc1")
    E.e("s_mov_b64 exec, -1")
    E.label(".Lpro1")
    E.e(f"s_waitcnt vmcnt({2 * PFD + 4 * BULK}) lgkmcnt(0)")
    E.lds_drain()
    E.e("s_barrier")
    stamp(3)
    E.e(f"s_cmp_eq_u32 s{S_NSEG}, 2")
    E.e("s_cbranch_scc0 .Lpro2")
    for s_ in range(16):
        E.e(f"buffer_load_dwordx4 {ar(A_Q2 + 4 * s_, 4)}, v{V_QOFF}, s[4:7], s{S_QB2} offen offset:{32 * s_}")
    E.label(".Lpro2")
    for i in range(LK):
        k_read(i, 1)
    dma = dma_ops(0, 1)
    run_ops(dma[:NDMA_TAIL])
    dma_rest_even = dma[NDMA_TAIL:]
    entry_q = list(E.ldsq)
    E.e(f"v_mov_b32 v{V_FLAG}, 0")
    E.e(f"s_mov_b32 s{S_SHIFT}, 0")
    E.e(f"s_cmp_eq_u32 s{S_N}, 2")
    E.e("s_cbranch_scc1 .Lt0m")
    E.e(f"s_sub_u32 s{S_CNT}, s{S_N}, 2")
    E.e(f"s_lshr_b32 s{S_CNT}, s{S_CNT}, 1")

    E.block("iter0")
    E.label(".Lloop")
    r = iteration(0, False, "i0", dma_ops(0, 1)[NDMA_TAIL:])
    assert list(E.ldsq) == entry_q
    E.e(f"s_sub_u32 s{S_CNT}, s{S_CNT}, 1")
    E.e(f"s_cmp_eq_u32 s{S_CNT}, 0")
    E.e("s_cbranch_scc1 .Lt1m_pre")
    E.block("iter1")
    iteration(1, False, "i1", dma_ops(1, 0)[NDMA_TAIL:])
    assert list(E.ldsq) == entry_q
    E.e("s_branch .Lloop")
    E.block("iter1m")
    E.label(".Lt1m_pre")
    E.e(f"s_cmp_eq_u32 s{S_ACT}, 1")
    E.e("s_cbranch_scc0 .Lt1m_nf")
    flag_addr()
    E.e(f"buffer_load_dword v{V_FLAG}, v{V_T2}, s[24:27], 0 offen sc0 sc1")
    E.label(".Lt1m_nf")
    set_thr(2)
    iteration(1, True, "i1m", dma_ops(1, 0)[NDMA_TAIL:])
    assert list(E.ldsq) == entry_q
    E.block("iter0m")
    E.e(f"s_cmp_eq_u32 s{S_ACT}, 1")
    E.e("s_cbranch_scc0 .Lt0m")
    flag_test()
    E.e("s_cbranch_scc0 .Lt0m_again")
    partner_loads()
    E.e(f"s_mov_b32 s{S_HAVE}, 1")
    E.e("s_branch .Lt0m")
    E.label(".Lt0m_again")
    E.e(f"buffer_load_dword v{V_FLAG}, v{V_T2}, s[24:27], 0 offen sc0 sc1")
    E.label(".Lt0m")
    if LITE:
        E.e(f"s_cmp_eq_u32 s{S_ACT}, {3 if SWAP else 1}")
        E.e("s_cbranch_scc1 .Lt0m_full")
        E.e(f"s_cmp_lt_u32 s{S_WAVE}, 2")
        E.e("s_cbranch_scc1 .Lt0m_lite")
        E.label(".Lt0m_full")
    set_thr(1)
    iteration(0, True, "i0m", dma_ops(0, 1)[NDMA_TAIL:])
    assert list(E.ldsq) == entry_q
    E.block("final1")
    E.e(f"s_cmp_eq_u32 s{S_ACT}, 1")
    E.e("s_cbranch_scc0 .Lf1")
    E.e(f"s_cmp_eq_u32 s{S_HAVE}, 1")
    E.e("s_cbranch_scc1 .Lf1")
    flag_test()
    E.e("s_cbranch_scc0 .Lf1")
    partner_loads()
    E.e(f"s_mov_b32 s{S_HAVE}, 1")
    E.label(".Lf1")
    E.e("s_waitcnt lgkmcnt(0)")
    E.lds_drain()
    phase_a(1, dma_ops(1, 0)[NDMA_TAIL:], with_mfma=False, tag="f1")
    phase_b(1, False, True)
    E.e("s_waitcnt lgkmcnt(0)")
    E.lds_drain()

    if LITE:
        E.e("s_branch .Lepi")
        E.block("lite")
        E.label(".Lt0m_lite")
        E.ldsq = list(entry_q)
        E.e("s_waitcnt lgkmcnt(0)")
        E.lds_drain()
        phase_a(0, dma_ops(0, 1)[NDMA_TAIL:], with_mfma=False, tag="l0")
        phase_b(0, False, False, nosm=True)
        E.e("s_waitcnt lgkmcnt(0)")
        E.lds_drain()
        run_ops(dma_ops(1, 0)[NDMA_TAIL:])
        E.e("s_nop 7")
    E.block("epilogue")
    E.label(".Lepi")
    stamp(4)
    E.e(f"v_mov_b32 v{V_T0}, v{V_L}")
    E.e("s_nop 1")
    E.e(f"v_permlane32_swap_b32 v{V_L}, v{V_T0}")
    E.e(f"v_add_f32 v{V_L}, v{V_L}, v{V_T0}")
    E.e(f"s_cmp_eq_u32 s{S_ACT}, 1")
    E.e("s_cbranch_scc1 .Lcombine")
    E.e(f"s_cmp_ge_u32 s{S_ACT}, 2")
    E.e("s_cbranch_scc1 .Lpublish")
    E.label(".Lstore")
    E.e(f"v_rcp_f32 v{V_ALPHA}, v{V_L}")
    E.e("s_nop 7")
    E.e("s_nop 3")
    store_epilogue(False)
    stamp(5)
    E.e(f"s_cmp_eq_u32 s{S_NSEG}, 2")
    E.e("s_cbranch_scc0 .Lfin")
    if STAMP:
        for i in range(4):
            E.e(f"s_mov_b32 s{86 + 6 + i}, s{86 + 2 + i}")
    E.label(".Lswitch")
    E.e(f"s_mov_b32 s{S_FIRST}, 0")
    E.e(f"s_mov_b32 s{S_NSEG}, 1")
    E.e(f"s_mov_b32 s{S_QB}, s{S_QB2}")
    E.e(f"s_mov_b32 s{S_T0}, s{S_T02}")
    E.e(f"s_mov_b32 s{S_N}, s{S_N2}")
    E.e(f"s_mov_b32 s{S_ACT}, s{S_ACT2}")
    for i in range(64):
        E.e(f"v_accvgpr_mov_b32 a{A_Q + i}, a{A_Q2 + i}")
    E.e("s_branch .Lseg")

    E.block("combine")
    E.label(".Lpublish")
    E.e("s_nop 7")
    E.e("s_nop 3")
    E.e(f"s_mov_b32 s{S_SOFF}, 0")
    for j in range(8):
        x = EP + 32 * (j % 2)
        for r_ in range(16):
            E.e(f"v_accvgpr_read_b32 v{x + r_}, a{A_O + 16 * j + r_}")
        for k in range(8):
            E.e(f"v_cvt_pk_bf16_f32 v{x + 16 + k}, v{x + 2 * k}, v{x + 2 * k + 1}")
        for gp in range(2):
            g = 2 * j + gp
            E.e(f"buffer_store_dwordx4 {vr(x + 16 + 4 * gp, 4)}, v{V_WSOFF}, s[20:23], s{S_SOFF} offen offset:{1024 * (g % 4)} sc1")
        if j % 2 == 1:
            E.e(f"s_add_u32 s{S_SOFF}, s{S_SOFF}, 0x1000")
    E.e(f"buffer_store_dword v{V_L}, v{V_WSOFF}, s[20:23], s{S_SOFF} offen sc1")
    E.e(f"buffer_store_dword v{V_M}, v{V_WSOFF}, s[20:23], s{S_SOFF} offen offset:4 sc1")
    E.e(f"s_mov_b32 s{S_PUB}, 1")
    if SWAP:
        E.e("s_waitcnt vmcnt(0)")
        flag_addr()
        E.e("s_mov_b64 exec, 1")
        E.e(f"buffer_atomic_or v{V_T3}, v{V_T2}, s[24:27], 0 offen sc1")
        E.e("s_mov_b64 exec, -1")
        stamp(5)
        E.e("s_branch .Lfin")
    if STAMP:
        stamp(5)
        for i in range(4):
            E.e(f"s_mov_b32 s{86 + 6 + i}, s{86 + 2 + i}")
    E.e("s_branch .Lswitch")
    E.label(".Lcombine")
    E.e(f"s_cmp_eq_u32 s{S_HAVE}, 1")
    E.e("s_cbranch_scc1 .Lready")
    flag_addr()
    E.label(".Lpoll")
    E.e(f"buffer_load_dword v{V_FLAG}, v{V_T2}, s[24:27], 0 offen sc0 sc1")
    E.e("s_waitcnt vmcnt(0)")
    flag_test()
    E.e("s_cbranch_scc1 .Lpolldone")
    E.e("s_sleep 8")
    E.e("s_branch .Lpoll")
    E.label(".Lpolldone")
    partner_loads()
    E.label(".Lready")
    E.e("s_waitcnt vmcnt(0)")
    E.e(f"v_max_f32 v{V_T2}, v{V_M}, v{V_OM}")
    E.e(f"v_sub_f32 v{V_T3}, v{V_M}, v{V_T2}")
    E.e(f"v_sub_f32 v{V_T1}, v{V_OM}, v{V_T2}")
    E.e(f"v_mul_f32 v{V_T3}, s{S_C}, v{V_T3}")
    E.e(f"v_mul_f32 v{V_T1}, s{S_C}, v{V_T1}")
    E.e(f"v_exp_f32 v{V_T3}, v{V_T3}")
    E.e(f"v_exp_f32 v{V_T1}, v{V_T1}")
    E.e("s_nop 0")
    E.e(f"v_mul_f32 v{V_L}, v{V_L}, v{V_T3}")
    E.e(f"v_fma_f32 v{V_L}, v{V_OL}, v{V_T1}, v{V_L}")
    E.e(f"v_rcp_f32 v{V_T0}, v{V_L}")
    E.e("s_nop 0")
    E.e(f"v_mul_f32 v{V_ALPHA}, v{V_T3}, v{V_T0}")
    E.e(f"v_mul_f32 v{V_FOT}, v{V_T1}, v{V_T0}")
    store_epilogue(True)
    stamp(5)
    E.e("s_branch .Lfin")

    for par in range(2):
        E.block(f"rare{par}")
        E.label(f".Lrare{par}")
        tile_max(par, V_T0, V_T1)
        E.e(f"v_max_f32 v{V_T0}, v{V_T0}, v{V_M}")
        E.e(f"v_sub_f32 v{V_T1}, v{V_M}, v{V_T0}")
        E.e(f"v_mul_f32 v{V_T1}, s{S_C}, v{V_T1}")
        E.e(f"v_exp_f32 v{V_ALPHA}, v{V_T1}")
        E.e(f"v_mov_b32 v{V_M}, v{V_T0}")
        E.e(f"v_mul_f32 v{V_NMC}, s{S_C}, v{V_M}")
        E.e(f"v_sub_f32 v{V_NMC}, 0, v{V_NMC}")
        E.e(f"v_mul_f32 v{V_L}, v{V_L}, v{V_ALPHA}")
        for i in range(0, 128, 4):
            for r_ in range(4):
                E.e(f"v_accvgpr_read_b32 v{TMP + 8 + r_}, a{A_O + i + r_}")
            for r_ in range(4):
                E.e(f"v_mul_f32 v{TMP + 8 + r_}, v{TMP + 8 + r_}, v{V_ALPHA}")
            for r_ in range(4):
                E.e(f"v_accvgpr_write_b32 a{A_O + i + r_}, v{TMP + 8 + r_}")
        run_ops(sm_stream(par, list(range(16)), first=True))
        E.e(f"v_add_f32 v{V_SA}, v{V_SA}, v{V_SB}")
        E.e(f"s_add_u32 s{S_RET}, s{S_RET}, 4")
        E.e(f"s_addc_u32 s{S_RET + 1}, s{S_RET + 1}, 0")
        E.e("s_nop 1")
        E.e(f"s_setpc_b64 s[{S_RET}:{S_RET + 1}]")

    E.block("end")
    E.label(".Lfin")
    if STAMP:
        E.e("s_waitcnt vmcnt(0)")
        stamp(10)
        stamp(11, True)
        E.e("s_lshl_b32 s64, s2, 2")
        E.e(f"s_add_u32 s64, s64, s{S_WAVE}")
        E.e("s_lshl_b32 s64, s64, 6")
        E.e("s_add_u32 s64, s64, 0x8000000")
        E.e("v_mov_b32 v1, s64")
        E.e("s_mov_b64 exec, 1")
        for i in range(12):
            E.e(f"v_mov_b32 v2, s{86 + i}")
            E.e(f"buffer_store_dword v2, v1, s[20:23], 0 offen offset:{4 * i}")
            E.e("s_nop 1")
        E.e("s_waitcnt vmcnt(0)")
        if STAMPD:
            E.e("s_and_b32 s64, s2, 0xffef")
            E.e(f"s_or_b32 s64, s64, s{S_WAVE}")
            E.e("s_cmp_eq_u32 s64, 0")
            E.e("s_cbranch_scc0 .Lnodbg")
            E.e("s_lshl_b32 s64, s2, 1")
            E.e("v_mov_b32 v1, s64")
            for i, sl in enumerate((2, 3, 4, 5, 10, 6, 7)):
                E.e(f"s_sub_u32 s65, s{86 + sl}, s86")
                E.e("v_mov_b32 v2, s65")
                E.e(f"buffer_store_dword v2, v1, s[24:27], 0 offen offset:{4 * i}")
                E.e("s_nop 1")
            E.e("s_sub_u32 s65, s97, s87")
            E.e("v_mov_b32 v2, s65")
            E.e("buffer_store_dword v2, v1, s[24:27], 0 offen offset:28")
            E.e("s_waitcnt vmcnt(0)")
            E.label(".Lnodbg")
        if STAMP2:
            E.e("s_mov_b64 exec, -1")
            E.e("s_lshl_b32 s64, s2, 2")
            E.e(f"s_add_u32 s64, s64, s{S_WAVE}")
            E.e("s_lshl_b32 s64, s64, 9")
            E.e("s_add_u32 s64, s64, 0x9000000")
            E.e(f"v_lshl_add_u32 v1, v{V_LANE}, 2, s64")
            E.e("buffer_store_dword v222, v1, s[20:23], 0 offen")
            E.e("buffer_store_dword v223, v1, s[20:23], 0 offen offset:256")
            E.e("s_waitcnt vmcnt(0)")
    E.label(".Lend")
    E.e("s_endpgm")


HEADER = """; Causal flash-attention forward, B=1 H=16 S=2048 D=256 bf16 (generated by my own script work/gen.py)
; @launch grid=(256,1,1) block=(256,1,1) lds=163840
.amdgcn_target "amdgcn-amd-amdhsa--gfx950"
.text
.globl standalone__softmax_full_causal__prompt_kernel
.p2align 8
.type standalone__softmax_full_causal__prompt_kernel,@function
standalone__softmax_full_causal__prompt_kernel:
"""
FOOTER = """.section .rodata,"a"
.p2align 6
.amdhsa_kernel standalone__softmax_full_causal__prompt_kernel
  .amdhsa_next_free_vgpr 512
  .amdhsa_next_free_sgpr 102
  .amdhsa_accum_offset 256
  .amdhsa_group_segment_fixed_size 0
  .amdhsa_kernarg_size 48
  .amdhsa_user_sgpr_count 2
  .amdhsa_user_sgpr_kernarg_segment_ptr 1
  .amdhsa_system_sgpr_workgroup_id_x 1
.end_amdhsa_kernel
"""

if __name__ == "__main__":
    gen()
    for name in E.order:
        b = E.blocks[name]
        nb = []
        for l in b:
            if nb and l.endswith(" lds") and " m0," in nb[-1]:
                nb.append("s_nop 0")
            nb.append(l)
        E.blocks[name] = nb
    out = HEADER
    for name in E.order:
        out += f"; ---- {name}\n"
        for l in E.blocks[name]:
            out += ("" if l.endswith(":") else "    ") + l + "\n"
    out += FOOTER
    open(sys.argv[1], "w").write(out)
    import pickle
    pickle.dump((E.order, E.blocks), open("blocks.pkl", "wb"))
    n = sum(len(b) for b in E.blocks.values())
    print("instructions:", n, {k: len(v) for k, v in E.blocks.items()})
```
